```python
import torch

def _softmax(x, axis=-1):
    return torch.softmax(x, dim=axis)
def _gelu(x):
    return torch.nn.functional.gelu(x, approximate="tanh")
def _silu(x):
    return torch.nn.functional.silu(x)
def _sigmoid(x):
    return torch.sigmoid(x)
def _layernorm(x, axis=-1, eps=1e-5):
    m = x.mean(dim=axis, keepdim=True)
    v = x.var(dim=axis, keepdim=True, unbiased=False)
    return (x - m) / torch.sqrt(v + eps)
def _scatter_add(tgt, idx, src, axis=0):
    return tgt.clone().index_add_(axis, idx, src)
def _segment_sum(src, seg, n):
    out = torch.zeros((n,) + src.shape[1:], dtype=src.dtype)
    return out.index_add_(0, seg, src)
def _pad(x, pw):
    flat = tuple(v for pair in reversed(pw) for v in pair)
    return torch.nn.functional.pad(x, flat)

kernel_name = 'sequential_preLN__ssm_conv_h3__swiglu_ffn__prompt'

def setup_inputs():

    _w = (lambda a: (lambda t: t.to(torch.bfloat16) if t.is_floating_point() else t)(torch.as_tensor(a)))
    def _A_setup():
        B, S, D = 1, 2048, 640
        ks = 4
        return {
            "q": _w((lambda *s: torch.randn(*s, dtype=torch.bfloat16) * 0.05)(B, S, D)),
            "k": _w((lambda *s: torch.randn(*s, dtype=torch.bfloat16) * 0.4)(B, S, D)),
            "v": _w((lambda *s: torch.randn(*s, dtype=torch.bfloat16) * 0.4)(B, S, D)),
            "shift_k": _w((lambda *s: torch.randn(*s, dtype=torch.bfloat16) * 0.4)(D, ks) * 0.5),
            "ssm_k": _w((lambda *s: torch.randn(*s, dtype=torch.bfloat16) * 0.4)(D, S) * (1.0 / S ** 0.5)),
            "ssm_D": _w((lambda *s: torch.randn(*s, dtype=torch.bfloat16) * 0.4)(D)),
        }
    _A_in = _A_setup()

    def _B_setup():
        B, S, D, F = 1, 2048, 640, 1728
        return {
            "x": _w((lambda *s: torch.randn(*s, dtype=torch.bfloat16) * 0.05)(B, S, D)),
            "w_gate": _w((lambda *s: torch.randn(*s, dtype=torch.bfloat16) * 0.05)(D, F)),
            "w_up": _w((lambda *s: torch.randn(*s, dtype=torch.bfloat16) * 0.05)(D, F)),
            "w_down": _w((lambda *s: torch.randn(*s, dtype=torch.bfloat16) * 0.05)(F, D)),
        }
    _B_in = _B_setup()

    return {
        "A_q": _A_in["q"],
        "A_k": _A_in["k"],
        "A_v": _A_in["v"],
        "A_shift_k": _A_in["shift_k"],
        "A_ssm_k": _A_in["ssm_k"],
        "A_ssm_D": _A_in["ssm_D"],
        "B_x": _B_in["x"],
        "B_w_gate": _B_in["w_gate"],
        "B_w_up": _B_in["w_up"],
        "B_w_down": _B_in["w_down"],
    }

def reference(A_q, A_k, A_v, A_shift_k, A_ssm_k, A_ssm_D, B_x, B_w_gate, B_w_up, B_w_down):
    def _A_ref(q, k, v, shift_k, ssm_k, ssm_D):
        B, S, D = q.shape
        ks = shift_k.shape[-1]
        k_pad = _pad(k, ((0, 0), (ks - 1, 0), (0, 0)))
        k_shift = torch.zeros_like(k)
        for t in range(ks):
            k_shift = k_shift + k_pad[:, t:t + S, :] * shift_k[:, ks - 1 - t][None, None, :]
        kv = k_shift * v
        L = 2 * S
        kv_pad = _pad(kv, ((0, 0), (0, S), (0, 0)))
        kf_pad = _pad(ssm_k, ((0, 0), (0, S)))
        kv_f = (lambda x, axes=(-2,-1): torch.fft.rfft2(x.float(), dim=axes))(kv_pad[:, None, :, :], axes=(1, 2))
        kf_f = (lambda x, axes=(-2,-1): torch.fft.rfft2(x.float(), dim=axes))(kf_pad[:, None, :], axes=(1, 2))
        kf_f = (lambda x, *d: x.permute(*d))(kf_f, 1, 2, 0)
        y_f = kv_f * kf_f[None, :, :, :]
        y = (lambda x, s, axes=(-2,-1): torch.fft.irfft2(x, s=s, dim=axes).to(torch.bfloat16))(y_f, (1, L), axes=(1, 2))[:, 0, :S, :]
        y = y + kv * ssm_D[None, None, :]
        return q * y

    def _B_ref(x, w_gate, w_up, w_down):
        g = _silu(x @ w_gate)
        u = x @ w_up
        return (g * u) @ w_down

    x = A_q
    h = x + _A_ref(_layernorm(x, axis=-1), A_k, A_v, A_shift_k, A_ssm_k, A_ssm_D)
    h2 = h + _B_ref(_layernorm(h, axis=-1), B_w_gate, B_w_up, B_w_down)
    return h2
```

```python
import re

REG_RE = re.compile(r'^(v|a|s)(\d+)$')
RNG_RE = re.compile(r'^(v|a|s)\[(\d+):(\d+)\]$')

def regs_of(op):
    op = op.strip()
    neg = op.lstrip('-').replace('|', '')
    m = REG_RE.match(neg)
    if m: return {(m.group(1), int(m.group(2)))}
    m = RNG_RE.match(neg)
    if m: return {(m.group(1), i) for i in range(int(m.group(2)), int(m.group(3)) + 1)}
    if neg == 'vcc': return {('s', 106), ('s', 107)}
    if neg == 'vcc_lo': return {('s', 106)}
    if neg == 'vcc_hi': return {('s', 107)}
    if neg == 'exec': return {('s', 126), ('s', 127)}
    if neg == 'm0': return {('s', 124)}
    return set()

TRANS = ('v_exp_f32', 'v_rcp_f32', 'v_rsq_f32', 'v_log_f32', 'v_sqrt_f32')
VCC = {('s', 106), ('s', 107)}
EXEC = {('s', 126), ('s', 127)}
M0 = {('s', 124)}

class Ins:
    def __init__(self, text):
        self.text = text
        t = text.split(';')[0].strip()
        self.dst = set(); self.src = set(); self.kind = 'other'
        self.srcc = set(); self.ab = set(); self.data = set()
        self.tok = None
        if not t or t.endswith(':') or t.startswith('.'):
            self.kind = 'label' if t.endswith(':') else 'none'; self.op = ''; return
        parts = t.split(None, 1)
        op = parts[0]; self.op = op
        rest = parts[1] if len(parts) > 1 else ''
        ops = []; depth = 0; cur = ''
        for ch in rest:
            if ch == '[': depth += 1
            if ch == ']': depth -= 1
            if ch == ',' and depth == 0: ops.append(cur.strip()); cur = ''
            else: cur += ch
        if cur.strip(): ops.append(cur.strip())
        mods = ''
        if ops:
            last = ops[-1].split(None, 1)
            ops[-1] = last[0]
            mods = last[1] if len(last) > 1 else ''
        self.mods = mods
        R = [regs_of(o) for o in ops]
        allr = lambda xs: set().union(*xs) if xs else set()
        if op.startswith('v_mfma'):
            self.kind = 'mfma'; self.dst = R[0]; self.ab = R[1] | R[2]; self.srcc = R[3]; self.src = self.ab | self.srcc
            self.passes = 8 if '32x32' in op else 4
        elif op.startswith('v_'):
            self.kind = 'valu'
            self.dpp = ('dpp' in op) or ('row_' in mods) or ('quad_perm' in mods) or ('wave_' in mods)
            if op.startswith('v_cmp'):
                self.dst = R[0]; self.src = allr(R[1:])
                if op.startswith('v_cmpx'): self.dst |= EXEC
            elif 'permlane' in op:
                self.dst = R[0] | R[1]; self.src = R[0] | R[1]
            elif op.startswith(('v_add_co', 'v_sub_co', 'v_addc_co', 'v_subb_co')):
                self.dst = R[0] | R[1]; self.src = allr(R[2:])
            else:
                self.dst = R[0]; self.src = allr(R[1:])
                if op.startswith(('v_fmac', 'v_dot2c', 'v_mac', 'v_pk_fmac')) or self.dpp: self.src |= R[0]
                if op.startswith('v_cndmask') and len(ops) == 3: self.src |= VCC
        elif op.startswith(('buffer_', 'global_')):
            self.kind = 'vmem'
            islds = (' lds' in (' ' + mods)) or ('_lds_' in op)
            self.islds = islds
            if 'store' in op:
                self.src = allr(R); self.data = R[0] if op.startswith('buffer_') else R[1]
                self.wide = ('x4' in op or 'x3' in op)
            elif 'atomic' in op:
                self.src = allr(R)
                if 'sc0' in mods: self.dst = R[0]
            elif islds:
                self.src = allr(R) | M0
            elif op in ('buffer_wbl2', 'buffer_inv'):
                pass
            else:
                self.dst = R[0]; self.src = allr(R[1:])
        elif op.startswith('ds_'):
            self.kind = 'ds'
            if 'read' in op or 'bpermute' in op or 'swizzle' in op or 'rtn' in op:
                self.dst = R[0]; self.src = allr(R[1:])
            else:
                self.src = allr(R)
        elif op.startswith('s_load') or op.startswith('s_buffer_load') or op.startswith('s_memrealtime') or op.startswith('s_memtime'):
            self.kind = 'smem'; self.dst = R[0]; self.src = allr(R[1:])
        elif op.startswith('s_'):
            self.kind = 'salu'
            if op.startswith(('s_cmp', 's_cbranch', 's_branch', 's_waitcnt', 's_barrier', 's_nop', 's_endpgm', 's_setprio', 's_sleep', 's_bitcmp')):
                self.src = allr(R)
            else:
                self.dst = R[0] if R else set(); self.src = allr(R[1:])
                if 'saveexec' in op: self.dst |= EXEC; self.src |= EXEC
        else:
            raise ValueError('unknown op ' + text)

class Asm:
    def __init__(self):
        self.ins = []
    def e(self, text):
        for line in text.split('\n'):
            if line.strip(): self.ins.append(Ins(line.strip()))
        return self.ins[-1]
    def waitvm(self, tok):
        i = Ins('s_nop 0'); i.kind = 'waitvm'; i.tok = tok; self.ins.append(i)
    def waitlgkm(self, tok):
        i = Ins('s_nop 0'); i.kind = 'waitlgkm'; i.tok = tok; self.ins.append(i)
    def reset(self):
        i = Ins('s_nop 0'); i.kind = 'reset'; self.ins.append(i)

    def finish(self):
        out = []
        vm = []
        lg = []
        def emit_wait(nvm=None, nlg=None):
            parts = []
            if nvm is not None: parts.append(f'vmcnt({min(nvm,63)})')
            if nlg is not None: parts.append(f'lgkmcnt({min(nlg,15)})')
            out.append(Ins('s_waitcnt ' + ' '.join(parts)))
        for i in self.ins:
            if i.kind == 'reset':
                vm = []; lg = []; out.append(i); continue
            if i.kind == 'waitvm':
                if i.tok in vm:
                    k = vm.index(i.tok); n = len(vm) - 1 - k
                    emit_wait(nvm=n); vm = vm[len(vm) - min(n, 63):] if n else []
                continue
            if i.kind == 'waitlgkm':
                if i.tok in lg:
                    k = lg.index(i.tok); n = len(lg) - 1 - k
                    if any(x.kind == 'smem' for x in lg): n = 0
                    emit_wait(nlg=n); lg = lg[len(lg) - min(n, 15):] if n else []
                continue
            if i.op == 's_waitcnt':
                m = re.search(r'vmcnt\((\d+)\)', i.text)
                if m:
                    n = int(m.group(1)); vm = vm[len(vm) - n:] if 0 < n < len(vm) else (vm if n >= len(vm) else [])
                m = re.search(r'lgkmcnt\((\d+)\)', i.text)
                if m:
                    n = int(m.group(1))
                    if n == 0: lg = []
                    elif not any(x.kind == 'smem' for x in lg): lg = lg[len(lg) - n:] if n < len(lg) else lg
                out.append(i); continue
            touch = i.src | i.dst
            nvm = None; nlg = None
            for k in range(len(vm) - 1, -1, -1):
                if vm[k].dst & touch:
                    nvm = len(vm) - 1 - k; break
            for k in range(len(lg) - 1, -1, -1):
                if lg[k].dst & touch:
                    nlg = len(lg) - 1 - k
                    if any(x.kind == 'smem' for x in lg): nlg = 0
                    break
            if nvm is not None or nlg is not None:
                emit_wait(nvm, nlg)
                if nvm is not None: n = min(nvm, 63); vm = vm[len(vm) - n:] if n else []
                if nlg is not None: n = min(nlg, 15); lg = lg[len(lg) - n:] if n else []
            if i.kind == 'vmem': vm.append(i)
            if i.kind in ('ds', 'smem'): lg.append(i)
            out.append(i)
        res = []
        hist = []
        def states(x):
            if x.kind in ('label', 'none', 'reset'): return 0
            if x.op == 's_nop': return int(x.text.split()[1]) + 1
            return 1
        for i in out:
            if i.kind == 'reset':
                continue
            if i.kind in ('label', 'none'):
                res.append(i); continue
            need = 0; dist = 0
            for p in reversed(res[-40:]):
                if p.kind in ('label', 'none'): continue
                req = 0
                pv = {r for r in p.dst if r[0] in 'va'}
                ps = {r for r in p.dst if r[0] == 's'}
                if p.kind == 'valu':
                    isdot = p.op.startswith('v_dot')
                    if i.kind == 'mfma' and pv & i.src: req = max(req, 3 if isdot else 2)
                    if i.kind == 'valu':
                        if i.dpp and pv & i.src: req = max(req, 2)
                        if 'permlane' in i.op and pv & i.src: req = max(req, 2)
                        if i.op.startswith(('v_readfirstlane', 'v_readlane')) and pv & i.src: req = max(req, 1)
                        if p.op.startswith(TRANS) and pv & i.src and not i.op.startswith(TRANS): req = max(req, 1)
                        if ps & i.src: req = max(req, 2)
                        if ps & EXEC and i.dpp: req = max(req, 5)
                        if ps & EXEC and (i.op.startswith(('v_readfirstlane', 'v_readlane')) or 'permlane' in i.op): req = max(req, 4)
                        if ('op_sel' in p.mods or 'sdwa' in p.op) and not p.op.startswith('v_pk') and pv & (i.src | i.dst): req = max(req, 1)
                    if isdot and pv & (i.src | i.dst):
                        if i.op == p.op and not (pv & (i.src - i.dst)): pass
                        else: req = max(req, 3)
                    if i.kind == 'vmem' and ps & i.src: req = max(req, 5)
                    if i.kind == 'mfma' and ps & EXEC: req = max(req, 4)
                if p.kind == 'mfma':
                    n = 8 if p.passes == 4 else 12
                    if i.kind == 'mfma':
                        if p.dst & i.ab: req = max(req, n)
                        if p.dst & i.srcc and not (p.dst == i.srcc and p.passes == i.passes): req = max(req, n - 2)
                        if p.dst & i.dst and not (p.dst == i.srcc and p.passes == i.passes): req = max(req, n)
                    elif i.kind in ('valu', 'vmem', 'ds'):
                        if p.dst & (i.src | i.dst): req = max(req, n)
                        if i.kind == 'valu' and p.srcc & i.dst: req = max(req, 3 if p.passes == 4 else 7)
                if p.kind == 'salu' and (p.dst & M0) and i.kind == 'vmem' and getattr(i, 'islds', False): req = max(req, 1)
                if p.kind == 'vmem' and getattr(p, 'wide', False) and p.data & i.dst:
                    req = max(req, 2 if i.kind == 'valu' else 1)
                if req > dist: need = max(need, req - dist)
                dist += states(p)
                if dist >= 20: break
            while need > 0:
                k = min(need, 8)
                res.append(Ins(f's_nop {k-1}')); need -= k
            res.append(i)
        return res

    def text(self):
        lines = []
        for i in self.finish():
            lines.append(i.text if i.kind == 'label' else '  ' + i.text)
        return '\n'.join(lines) + '\n'

def interleave(main, fill, start=0, per=1):
    out = []; j = 0
    for k, m in enumerate(main):
        out.append(m)
        if k >= start:
            for _ in range(per):
                if j < len(fill): out.append(fill[j]); j += 1
    out.extend(fill[j:])
    return out

def v(a, n=1):
    return f'v{a}' if n == 1 else f'v[{a}:{a+n-1}]'
def s(a, n=1):
    return f's{a}' if n == 1 else f's[{a}:{a+n-1}]'
```

```python
import sys
from asmlib import *

NAME = 'sequential_preLN__ssm_conv_h3__swiglu_ffn__prompt'
STR = 4224
def al(x, a): return (x + a - 1) // a * a
KVT = 0
XT = KVT + 640 * STR
RS = XT + 640 * STR
MRS = RS + 8192
HT = al(MRS + 8192, 4096)
W1P = HT + 2621440
WDP = W1P + 16 * 20 * 14 * 1024
CS = WDP + 8 * 54 * 5 * 1024
ACT = al(CS + 5 * 14336, 4096)
WSEND = ACT + 32 * 56 * 4 * 1024
NB_X = 2621440
NB_W = 2211840
LOG2E = 0x3fb8aa3b
MF = 'v_mfma_f32_16x16x32_bf16'

def srd_consts(a, base, size):
    a.e(f's_mov_b32 s{base+2}, {size}')
    a.e(f's_mov_b32 s{base+3}, 0x20000')
def srd_fix(a, base):
    a.e(f's_and_b32 s{base+1}, s{base+1}, 0xffff')

def k0():
    a = Asm()
    a.e('s_cmp_ge_u32 s2, 448\ns_cbranch_scc1 L0_end')
    a.e('s_load_dwordx2 s[4:5], s[0:1], 0')
    a.e('s_load_dwordx2 s[8:9], s[0:1], 8')
    a.e('s_load_dwordx2 s[12:13], s[0:1], 16')
    a.e('s_load_dwordx2 s[16:17], s[0:1], 24')
    a.e('s_load_dwordx2 s[20:21], s[0:1], 96')
    srd_consts(a, 4, NB_X); srd_consts(a, 8, NB_X); srd_consts(a, 12, NB_X); srd_consts(a, 16, 5120); srd_consts(a, 20, WSEND)
    a.e('s_cmp_ge_u32 s2, 320\ns_cbranch_scc1 L0_stats')
    a.e('s_mul_i32 s24, s2, 0xcccd\ns_lshr_b32 s24, s24, 19')
    a.e('s_mul_i32 s25, s24, 10\ns_sub_u32 s25, s2, s25')
    a.e('v_and_b32 v1, 31, v0\nv_lshrrev_b32 v2, 5, v0')
    a.e('s_lshl_b32 s26, s24, 6')
    a.e('v_lshl_add_u32 v3, v2, 3, s26')
    a.e('s_lshl_b32 s27, s25, 6')
    a.e('v_lshl_add_u32 v4, v1, 1, s27')
    a.e('s_movk_i32 s28, 1280\ns_movk_i32 s29, 5120')
    a.e('v_mul_u32_u24 v5, s28, v3\nv_lshl_add_u32 v5, v4, 1, v5')
    a.e('v_subrev_u32 v6, 3840, v5')
    a.e('v_lshlrev_b32 v7, 3, v4')
    a.e('s_waitcnt lgkmcnt(0)')
    for b in (4, 8, 12, 16, 20): srd_fix(a, b)
    K = 10; V = 21; X = 29; W = 40
    for j in range(3): a.e(f'buffer_load_dword v{K+j}, v6, s[8:11], 0 offen offset:{1280*j}')
    for j in range(8): a.e(f'buffer_load_dword v{K+3+j}, v5, s[8:11], {"s29" if j>=4 else "0"} offen offset:{1280*(j&3)}')
    a.e(f'buffer_load_dwordx4 v[{W}:{W+3}], v7, s[16:19], 0 offen')
    for j in range(8): a.e(f'buffer_load_dword v{V+j}, v5, s[12:15], {"s29" if j>=4 else "0"} offen offset:{1280*(j&3)}')
    for j in range(8): a.e(f'buffer_load_dword v{X+j}, v5, s[4:7], {"s29" if j>=4 else "0"} offen offset:{1280*(j&3)}')
    a.e(f's_movk_i32 s30, {STR}')
    a.e('v_mul_u32_u24 v8, s30, v4')
    a.e('v_sub_u32 v9, 2040, v3\nv_lshl_add_u32 v9, v9, 1, v8')
    a.e('v_lshl_add_u32 v8, v3, 1, v8')
    a.e(f's_mov_b32 s31, {KVT+STR}\ns_mov_b32 s32, {XT}\ns_mov_b32 s33, {XT+STR}\ns_mov_b32 s36, {KVT}')
    a.e('s_mov_b32 s34, 0x05040100\ns_mov_b32 s35, 0x07060302\ns_mov_b32 s37, 0xffff0000')
    KP = 44; WP = 66; VP = 74; AC = 90; O = 106
    for j in range(11):
        a.e(f'v_lshlrev_b32 v{KP+2*j}, 16, v{K+j}\nv_and_b32 v{KP+2*j+1}, s37, v{K+j}')
    for j in range(4):
        for ch in range(2):
            src = W + 2 * ch + (j >> 1)
            if j & 1: a.e(f'v_and_b32 v{WP+2*j+ch}, s37, v{src}')
            else: a.e(f'v_lshlrev_b32 v{WP+2*j+ch}, 16, v{src}')
    for i in range(8):
        a.e(f'v_pk_mul_f32 {v(AC+2*i,2)}, {v(WP,2)}, {v(KP+2*(i+3),2)}')
    for j in range(1, 4):
        for i in range(8):
            a.e(f'v_pk_fma_f32 {v(AC+2*i,2)}, {v(WP+2*j,2)}, {v(KP+2*(i+3-j),2)}, {v(AC+2*i,2)}')
    for j in range(8):
        a.e(f'v_lshlrev_b32 v{VP+2*j}, 16, v{V+j}\nv_and_b32 v{VP+2*j+1}, s37, v{V+j}')
    for i in range(8):
        a.e(f'v_pk_mul_f32 {v(AC+2*i,2)}, {v(AC+2*i,2)}, {v(VP+2*i,2)}')
    for ch in range(2):
        for d in range(4):
            a.e(f'v_cvt_pk_bf16_f32 v{O+4*ch+d}, v{AC+2*(7-2*d)+ch}, v{AC+2*(6-2*d)+ch}')
    a.e(f'buffer_store_dwordx4 {v(O,4)}, v9, s[20:23], s36 offen')
    a.e(f'buffer_store_dwordx4 {v(O+4,4)}, v9, s[20:23], s31 offen')
    for ch in range(2):
        for d in range(4):
            a.e(f'v_perm_b32 v{O+8+4*ch+d}, v{X+2*d+1}, v{X+2*d}, s{34+ch}')
    a.e(f'buffer_store_dwordx4 {v(O+8,4)}, v8, s[20:23], s32 offen')
    a.e(f'buffer_store_dwordx4 {v(O+12,4)}, v8, s[20:23], s33 offen')
    a.e('s_endpgm')
    a.reset()
    a.e('L0_stats:')
    a.e('s_sub_u32 s24, s2, 320\ns_lshl_b32 s24, s24, 4')
    a.e('v_lshrrev_b32 v1, 4, v0\nv_add_u32 v1, s24, v1')
    a.e('v_and_b32 v2, 15, v0')
    a.e('s_movk_i32 s28, 1280')
    a.e('v_mul_u32_u24 v3, s28, v1\nv_lshl_add_u32 v3, v2, 4, v3')
    a.e('s_waitcnt lgkmcnt(0)')
    for b in (4, 20): srd_fix(a, b)
    for j in range(5): a.e(f'buffer_load_dwordx4 {v(8+4*j,4)}, v3, s[4:7], 0 offen offset:{256*j}')
    a.e('v_mov_b32 v4, 0\nv_mov_b32 v5, 0\nv_mov_b32 v6, 0x3f803f80')
    a.e('v_lshlrev_b32 v1, 2, v1')
    for j in range(20):
        a.e(f'v_dot2c_f32_bf16 v4, v6, v{8+j}\nv_dot2c_f32_bf16 v5, v{8+j}, v{8+j}')
    for r in (8, 4, 2, 1):
        a.e(f'v_add_f32_dpp v4, v4, v4 row_ror:{r} row_mask:0xf bank_mask:0xf')
        a.e(f'v_add_f32_dpp v5, v5, v5 row_ror:{r} row_mask:0xf bank_mask:0xf')
    a.e('v_mul_f32 v4, 0x3acccccd, v4')
    a.e('v_mul_f32 v5, 0x3acccccd, v5')
    a.e('v_fma_f32 v5, -v4, v4, v5\nv_max_f32 v5, 0, v5')
    a.e('v_add_f32 v5, 0x3727c5ac, v5\nv_rsq_f32 v5, v5')
    a.e('v_mul_f32 v4, v4, v5')
    a.e(f's_mov_b32 s30, {RS}\ns_mov_b32 s31, {MRS}')
    a.e('s_mov_b32 exec_lo, 0x00010001\ns_mov_b32 exec_hi, 0x00010001')
    a.e('buffer_store_dword v5, v1, s[20:23], s30 offen')
    a.e('buffer_store_dword v4, v1, s[20:23], s31 offen')
    a.e('L0_end:\ns_endpgm')
    return a.text(), 128

NPACK = 102
def k1():
    a = Asm()
    a.e(f's_cmp_ge_u32 s2, {160+NPACK}\ns_cbranch_scc1 L1_end')
    a.e('s_load_dwordx2 s[20:21], s[0:1], 96')
    srd_consts(a, 20, WSEND)
    a.e('v_lshrrev_b32 v1, 6, v0\nv_and_b32 v2, 63, v0')
    a.e('v_readfirstlane_b32 s3, v1')
    a.e('s_cmp_ge_u32 s2, 160\ns_cbranch_scc1 L1_pack')
    a.e('s_load_dwordx2 s[4:5], s[0:1], 32')
    a.e('s_load_dwordx2 s[8:9], s[0:1], 40')
    srd_consts(a, 4, 4096)
    a.e('s_lshl2_add_u32 s24, s2, s3')
    a.e('s_mul_i32 s25, s3, 12928')
    a.e('s_lshl_b32 s26, s24, 12')
    a.e('s_lshl_b32 s27, s24, 1\ns_and_b32 s27, s27, -4')
    a.e('v_lshlrev_b32 v3, 4, v2')
    a.e('v_subrev_u32 v4, 4, v3\nv_add_u32 v5, 1020, v3')
    a.e(f's_mul_i32 s28, s24, {STR}')
    a.e('s_waitcnt lgkmcnt(0)')
    a.e('s_load_dword s29, s[8:9], s27')
    a.e('s_add_u32 s4, s4, s26\ns_addc_u32 s5, s5, 0')
    srd_fix(a, 4); srd_fix(a, 20)
    ACC = 16; A0 = 48; A1 = 80; B0 = 112; B1 = 144; XR = 176; RR = 192; MR = 224
    FT = 80; PV = 96; OT = 144
    for c in range(4): a.e(f'buffer_load_dwordx4 {v(FT+4*c,4)}, v3, s[4:7], 0 offen offset:{1024*c}')
    a.e(f'buffer_load_dword v{PV}, v4, s[4:7], 0 offen')
    for c in range(1, 4): a.e(f'buffer_load_dword v{PV+c}, v5, s[4:7], 0 offen offset:{1024*(c-1)}')
    a.e('s_add_u32 m0, s25, 8320')
    if KVT: a.e(f's_add_u32 s30, s28, {KVT}')
    else: a.e('s_mov_b32 s30, s28')
    for c in range(4): a.e(f'buffer_load_dwordx4 v3, s[20:23], s30 offen offset:{1024*c} lds')
    a.e('s_add_u32 m0, s25, 32')
    a.e('v_and_b32 v6, 15, v2\nv_lshrrev_b32 v7, 4, v2')
    for c in range(4): dma_last = a.e(f'buffer_load_dwordx4 v3, s[4:7], 0 offen offset:{1024*c} lds')
    a.e('v_lshlrev_b32 v8, 5, v6\nv_lshl_add_u32 v8, v7, 3, v8')
    a.e('v_lshlrev_b32 v9, 1, v8')
    a.e(f's_add_u32 s31, s28, {XT}')
    a.e(f's_mov_b32 s32, {RS}\ns_mov_b32 s33, {RS+4096}\ns_mov_b32 s34, {MRS}\ns_mov_b32 s35, {MRS+4096}')
    for j in range(8): a.e(f'buffer_load_dwordx2 {v(XR+2*j,2)}, v8, s[20:23], s31 offen offset:{512*j}')
    for j in range(8): a.e(f'buffer_load_dwordx4 {v(RR+4*j,4)}, v9, s[20:23], s{32+(j>>2)} offen offset:{1024*(j&3)}')
    for j in range(8): a.e(f'buffer_load_dwordx4 {v(MR+4*j,4)}, v9, s[20:23], s{34+(j>>2)} offen offset:{1024*(j&3)}')
    a.e('v_add_u32 v10, 12416, v3')
    a.e('v_and_b32 v11, 1, v2\nv_lshlrev_b32 v11, 4, v11')
    a.e('v_add_u32 v12, 4160, v11')
    a.e('v_cmp_gt_u32 vcc, 32, v2\nv_cndmask_b32 v11, v12, v11, vcc')
    a.e('v_cmp_gt_u32 vcc, 30, v2\nv_cndmask_b32 v10, v11, v10, vcc')
    a.e('v_add_u32 v10, s25, v10')
    for i in range(4): a.e(f'v_mov_b32 v{OT+i}, 0')
    a.e(f'ds_write_b128 v10, {v(OT,4)}')
    a.e('v_and_b32 v11, 1, v6')
    a.e('v_cmp_eq_u32 vcc, 1, v11')
    a.e('v_mov_b32 v12, 4164\nv_mov_b32 v13, 2\nv_cndmask_b32 v12, v12, v13, vcc')
    a.e('v_lshl_add_u32 v12, v6, 1, v12\nv_lshl_add_u32 v12, v7, 4, v12\nv_add_u32 v12, s25, v12')
    a.e('v_add_u32 v13, 1024, v12\nv_add_u32 v14, 2048, v12\nv_add_u32 v15, 3072, v12')
    a.e('v_lshlrev_b32 v11, 5, v6\nv_sub_u32 v11, 8800, v11\nv_lshl_add_u32 v11, v7, 4, v11\nv_add_u32 v11, s25, v11')
    a.e('v_add_u32 v10, s25, v3')
    DG = 100
    a.e('v_lshlrev_b32 v4, 3, v7\nv_add_u32 v4, v4, v6\nv_sub_u32 v4, 15, v4')
    a.e('s_and_b32 s36, s24, 1\ns_lshl_b32 s36, s36, 4\ns_lshr_b32 s29, s29, s36\ns_and_b32 s29, s29, 0xffff')
    a.e('v_and_b32 v5, 1, v4\nv_lshlrev_b32 v5, 4, v5\nv_lshlrev_b32 v5, v5, s29')
    a.e('v_lshrrev_b32 v4, 1, v4')
    for i in range(4):
        a.e(f'v_cmp_eq_u32 vcc, {i}, v4\nv_cndmask_b32 v{DG+i}, 0, v5, vcc')
    for c in range(4):
        o = OT + 4 + 4 * c
        a.e(f'v_alignbit_b32 v{o}, v{FT+4*c}, v{PV+c}, 16')
        for i in range(1, 4): a.e(f'v_alignbit_b32 v{o+i}, v{FT+4*c+i}, v{FT+4*c+i-1}, 16')
        lastw = a.e(f'ds_write_b128 v10, {v(o,4)} offset:{4160+32+1024*c}')
    a.waitvm(dma_last)
    def reads(q, A, B):
        r = []
        for t in range(8): r.append(f'ds_read_b128 {v(B+4*t,4)}, v11 offset:{512*(7-t)+64*q}')
        for p in range(8):
            o = 128 * (p & 1) + 16 * q
            r.append(f'ds_read2_b32 {v(A+4*p,2)}, v{12+(p>>1)} offset0:{o} offset1:{o+1}')
            r.append(f'ds_read2_b32 {v(A+4*p+2,2)}, v{12+(p>>1)} offset0:{o+2} offset1:{o+3}')
        return r
    for x in reads(0, A0, B0): a.e(x)
    for jt in range(8): a.e(f'{MF} {v(ACC+4*jt,4)}, {v(DG,4)}, {v(B0+4*jt,4)}, 0')
    for q in range(8):
        A, B = (A0, B0) if q % 2 == 0 else (A1, B1)
        An, Bn = (A1, B1) if q % 2 == 0 else (A0, B0)
        m = []
        for p in range(8):
            for jt in range(p, 8):
                m.append(f'{MF} {v(ACC+4*jt,4)}, {v(A+4*p,4)}, {v(B+4*(jt-p),4)}, {v(ACC+4*jt,4)}')
        f = reads(q + 1, An, Bn) if q < 7 else []
        for x in interleave(m, f, start=2): a.e(x)
    a.e('v_lshrrev_b32 v4, 3, v6\ns_mov_b32 s36, 163840\nv_mul_lo_u32 v4, v4, s36')
    a.e('s_and_b32 s37, s24, 7\nv_and_b32 v5, 7, v6\nv_xor_b32 v5, s37, v5')
    a.e('v_lshl_add_u32 v4, v5, 5, v4\nv_lshl_add_u32 v4, v7, 3, v4')
    a.e(f's_lshl_b32 s38, s24, 8\ns_add_u32 s38, s38, {HT}\ns_mov_b32 s39, 0xffff0000')
    T = 48
    for jt in range(8):
        t = T + 8 * jt
        a.e(f'v_lshlrev_b32 v{t}, 16, v{XR+2*jt}\nv_and_b32 v{t+1}, s39, v{XR+2*jt}')
        a.e(f'v_lshlrev_b32 v{t+2}, 16, v{XR+2*jt+1}\nv_and_b32 v{t+3}, s39, v{XR+2*jt+1}')
        for h in range(2):
            a.e(f'v_pk_fma_f32 {v(t+4+2*h,2)}, {v(t+2*h,2)}, {v(RR+4*jt+2*h,2)}, {v(MR+4*jt+2*h,2)} neg_lo:[0,0,1] neg_hi:[0,0,1]')
    for jt in range(8):
        t = T + 8 * jt
        for h in range(2):
            a.e(f'v_pk_fma_f32 {v(t+2*h,2)}, {v(t+4+2*h,2)}, {v(ACC+4*jt+2*h,2)}, {v(t+2*h,2)}')
        a.e(f'v_cvt_pk_bf16_f32 v{t+4}, v{t}, v{t+1}\nv_cvt_pk_bf16_f32 v{t+5}, v{t+2}, v{t+3}')
        a.e(f'buffer_store_dwordx2 {v(t+4,2)}, v4, s[20:23], s38 offen')
        if jt < 7: a.e('s_add_u32 s38, s38, 327680')
    a.e('s_endpgm')
    a.reset()
    a.e('L1_pack:')
    a.e('s_sub_u32 s24, s2, 160\ns_lshl2_add_u32 s24, s24, s3')
    a.e('s_cmp_ge_u32 s24, 405\ns_cbranch_scc1 L1_end')
    a.e('v_lshrrev_b32 v3, 3, v2\nv_and_b32 v4, 7, v2')
    a.e('s_mov_b32 s34, 0x05040100\ns_mov_b32 s35, 0x07060302')
    srd_consts(a, 4, NB_W)
    a.e('s_cmp_ge_u32 s24, 270\ns_cbranch_scc1 L1_packd')
    a.e('s_cmp_ge_u32 s24, 135\ns_cselect_b32 s25, 1, 0')
    a.e('s_lshl_b32 s26, s25, 3\ns_add_u32 s26, s26, 56')
    a.e('s_load_dwordx2 s[4:5], s[0:1], s26')
    a.e('s_mul_i32 s26, s25, 135\ns_sub_u32 s24, s24, s26')
    a.e('s_mul_i32 s26, s24, 0xcccd\ns_lshr_b32 s26, s26, 18')
    a.e('s_mul_i32 s27, s26, 5\ns_sub_u32 s27, s24, s27')
    a.e('v_lshrrev_b32 v5, 2, v3\nv_and_b32 v6, 3, v3')
    a.e('v_lshlrev_b32 v7, 5, v5\nv_lshl_add_u32 v7, v6, 2, v7')
    a.e('s_lshl_b32 s28, s27, 7\nv_add_u32 v7, s28, v7')
    a.e('s_movk_i32 s29, 3456\nv_mul_u32_u24 v7, s29, v7')
    a.e('v_lshl_add_u32 v7, v4, 4, v7\ns_lshl_b32 s28, s26, 7\nv_add_u32 v7, s28, v7')
    for h in range(2):
        for jj in range(4):
            a.e(f's_mov_b32 s{40+4*h+jj}, {(64*h + 2*(jj&1) + 16*(jj>>1))*3456}')
    a.e('s_waitcnt lgkmcnt(0)')
    srd_fix(a, 4); srd_fix(a, 20)
    R = 16; Fg = 80; CSA = 144
    for h in range(2):
        for j in range(8):
            jj = ((j >> 1) & 1) + 2 * (j >> 2)
            a.e(f'buffer_load_dwordx4 {v(R+32*h+4*j,4)}, v7, s[4:7], s{40+4*h+jj} offen offset:{3456*(j&1)}')
    for half in range(2):
        a.e(f's_lshl_b32 s28, s26, 1\ns_add_u32 s28, s28, {half}')
        a.e('s_mul_i32 s29, s28, 37\ns_lshr_b32 s29, s29, 8')
        a.e('s_mul_i32 s30, s29, 7\ns_sub_u32 s30, s28, s30')
        a.e('s_lshl_b32 s29, s29, 1')
        a.e('s_cmp_ge_u32 s30, 4\ns_cselect_b32 s31, 1, 0\ns_add_u32 s29, s29, s31')
        a.e('s_and_b32 s30, s30, 3')
        a.e('s_mul_i32 s31, s30, 7\ns_mul_i32 s32, s25, 3')
        a.e('s_cmp_eq_u32 s30, 2\ns_cselect_b32 s31, 2, s31\ns_add_u32 s31, s31, s32')
        a.e('s_lshl_b32 s31, s31, 1')
        a.e('s_add_u32 s32, s25, 12')
        a.e('s_cmp_eq_u32 s30, 3\ns_cselect_b32 s31, s32, s31')
        a.e('s_cmp_ge_u32 s30, 2\ns_cselect_b32 s33, 7, 1')
        a.e('s_mul_i32 s36, s29, 286720\ns_lshr_b32 s37, s31, 1\ns_lshl_b32 s37, s37, 10\ns_add_u32 s36, s36, s37')
        a.e(f's_and_b32 s37, s31, 1\ns_lshl_b32 s37, s37, 7\ns_add_u32 s36, s36, s37\ns_add_u32 s36, s36, {W1P}')
        a.e('s_lshl_b32 s37, s33, 10')
        a.e('s_movk_i32 s38, 128\ns_cmp_eq_u32 s30, 3\ns_cselect_b32 s38, 286720, s38')
        e0 = 50 + 4 * half
        a.e(f's_mov_b32 s{e0}, s36\ns_add_u32 s{e0+1}, s36, s38\ns_add_u32 s{e0+2}, s36, s37\ns_add_u32 s{e0+3}, s{e0+2}, s38')
        a.e('s_mul_i32 s36, s29, 896\ns_lshl_b32 s37, s31, 5\ns_add_u32 s36, s36, s37')
        a.e(f's_mul_i32 s37, s27, 14336\ns_add_u32 s36, s36, s37\ns_add_u32 s36, s36, {CS}')
        a.e('s_lshl_b32 s37, s33, 6')
        a.e('s_cmp_eq_u32 s30, 3\ns_cselect_b32 s38, 896, 32')
        e0 = 60 + 4 * half
        a.e(f's_mov_b32 s{e0}, s36\ns_add_u32 s{e0+1}, s36, s38\ns_add_u32 s{e0+2}, s36, s37\ns_add_u32 s{e0+3}, s{e0+2}, s38')
    a.e('s_lshl_b32 s28, s27, 2\nv_add_u32 v8, s28, v5\ns_movk_i32 s29, 14336\nv_mul_u32_u24 v8, s29, v8')
    a.e('v_lshl_add_u32 v8, v6, 8, v8\nv_lshl_add_u32 v8, v4, 4, v8\nv_add_u32 v9, 28672, v8')
    a.e('v_mov_b32 v10, 0x3f803f80\nv_lshlrev_b32 v11, 2, v4')
    for e in range(8): a.e(f'v_mov_b32 v{CSA+e}, 0')
    for h in range(2):
        for e in range(8):
            f = Fg + 32 * h + 4 * e
            for i in range(4):
                a.e(f'v_perm_b32 v{f+i}, v{R+32*h+4*(2*i+1)+(e>>1)}, v{R+32*h+4*(2*i)+(e>>1)}, s{34+(e&1)}')
            a.e(f'buffer_store_dwordx4 {v(f,4)}, v{8+h}, s[20:23], s{50+e} offen')
        for i in range(4):
            for e in range(8):
                a.e(f'v_dot2c_f32_bf16 v{CSA+e}, v10, v{Fg+32*h+4*e+i}')
    for e in range(8): a.e(f'v_add_f32_dpp v{CSA+e}, v{CSA+e}, v{CSA+e} row_ror:8 row_mask:0xf bank_mask:0xf')
    for sw in ('v_permlane16_swap_b32', 'v_permlane32_swap_b32'):
        for e in range(8): a.e(f'v_mov_b32 v{CSA+8+e}, v{CSA+e}')
        for e in range(8): a.e(f'{sw} v{CSA+e}, v{CSA+8+e}')
        for e in range(8): a.e(f'v_add_f32 v{CSA+e}, v{CSA+e}, v{CSA+8+e}')
    a.e('s_mov_b64 exec, 0xff')
    for e in range(8): a.e(f'buffer_store_dword v{CSA+e}, v11, s[20:23], s{60+e} offen')
    a.e('s_endpgm')
    a.reset()
    a.e('L1_packd:')
    a.e('s_load_dwordx2 s[4:5], s[0:1], 72')
    a.e('s_sub_u32 s24, s24, 270')
    a.e('s_mul_i32 s26, s24, 0xcccd\ns_lshr_b32 s26, s26, 18')
    a.e('s_mul_i32 s27, s26, 5\ns_sub_u32 s27, s24, s27')
    a.e('v_lshrrev_b32 v5, 2, v3\nv_and_b32 v6, 3, v3')
    a.e('v_and_b32 v7, 1, v6\nv_lshlrev_b32 v7, 5, v7\nv_lshl_add_u32 v7, v5, 2, v7\nv_lshrrev_b32 v8, 1, v6\nv_add_u32 v7, v7, v8')
    a.e('s_lshl_b32 s28, s26, 6\nv_add_u32 v7, s28, v7\ns_movk_i32 s29, 1280\nv_mul_u32_u24 v7, s29, v7')
    a.e('v_lshl_add_u32 v7, v4, 4, v7\ns_lshl_b32 s28, s27, 8\nv_add_u32 v7, s28, v7')
    for jj in range(4): a.e(f's_mov_b32 s{40+jj}, {10240*jj}')
    a.e('s_waitcnt lgkmcnt(0)')
    srd_fix(a, 4); srd_fix(a, 20)
    for h in range(2):
        for j in range(8):
            a.e(f'buffer_load_dwordx4 {v(R+32*h+4*j,4)}, v7, s[4:7], s{40+(j&3)} offen offset:{2560*(j>>2)+128*h}')
    a.e('s_lshl_b32 s28, s26, 1\nv_add_u32 v8, s28, v5\ns_movk_i32 s29, 5120\nv_mul_u32_u24 v8, s29, v8\nv_lshl_add_u32 v8, v6, 8, v8')
    a.e('s_lshl_b32 s28, s27, 5\nv_lshl_add_u32 v9, v4, 1, s28')
    a.e('s_mov_b32 s30, 276480\ns_movk_i32 s31, 205')
    for h in range(2):
        for eh in range(2):
            b = 12 + 2 * h + eh
            a.e(f'v_add_u32 v10, {16*h+eh}, v9')
            a.e('v_mul_u32_u24 v11, s31, v10\nv_lshrrev_b32 v11, 10, v11')
            a.e(f'v_mul_u32_u24 v{b}, 5, v11\nv_sub_u32 v10, v10, v{b}')
            a.e(f'v_lshl_add_u32 v{b}, v10, 10, v8')
            a.e(f'v_and_b32 v10, 3, v11\nv_lshl_add_u32 v{b}, v10, 6, v{b}')
            a.e(f'v_lshrrev_b32 v11, 2, v11\nv_mad_u32_u24 v{b}, v11, s30, v{b}')
    a.e(f's_mov_b32 s32, {WDP}')
    for h in range(2):
        for e in range(8):
            f = Fg + 32 * h + 4 * e
            for i in range(4):
                a.e(f'v_perm_b32 v{f+i}, v{R+32*h+4*(2*i+1)+(e>>1)}, v{R+32*h+4*(2*i)+(e>>1)}, s{34+(e&1)}')
            a.e(f'buffer_store_dwordx4 {v(f,4)}, v{12+2*h+(e>>2)}, s[20:23], s32 offen offset:{16*(e&3)}')
    a.e('L1_end:\ns_endpgm')
    return a.text(), 256

K2_LDS = 135168 + 1024 + 1024
def k2():
    a = Asm()
    a.e('s_cmp_ge_u32 s2, 256\ns_cbranch_scc1 L2_end')
    a.e('s_load_dwordx2 s[20:21], s[0:1], 96')
    srd_consts(a, 20, WSEND)
    a.e('v_lshrrev_b32 v1, 6, v0\nv_and_b32 v2, 63, v0')
    a.e('v_readfirstlane_b32 s3, v1')
    a.e('s_and_b32 s4, s2, 1\ns_lshl_b32 s4, s4, 3\ns_bfe_u32 s5, s2, 0x30003\ns_add_u32 s4, s4, s5')
    a.e('s_bfe_u32 s5, s2, 0x20001\ns_lshl_b32 s5, s5, 2\ns_lshr_b32 s6, s2, 6\ns_add_u32 s5, s5, s6')
    a.e('s_lshr_b32 s6, s3, 1\ns_and_b32 s7, s3, 1')
    a.e('v_lshlrev_b32 v3, 4, v2\nv_add_u32 v4, 4096, v3')
    a.e('s_mul_i32 s8, s3, 7168')
    a.e(f's_mul_i32 s9, s5, 286720\ns_add_u32 s9, s9, s8\ns_add_u32 s9, s9, {W1P}')
    a.e('s_add_u32 s8, s8, 49152')
    a.e('s_lshl_b32 s10, s3, 12')
    a.e(f's_mul_i32 s11, s4, 163840\ns_add_u32 s11, s11, s10\ns_add_u32 s11, s11, {HT}')
    a.e(f's_mul_i32 s12, s5, 896\ns_add_u32 s12, s12, {CS}')
    a.e('v_min_u32 v5, 223, v0\nv_lshlrev_b32 v5, 2, v5')
    a.e('s_waitcnt lgkmcnt(0)')
    srd_fix(a, 20)
    toks = {}
    def dma(st):
        buf = st % 3
        r = []
        r.append(f's_add_u32 m0, s10, {buf*16384}')
        for j in range(4): r.append(f'buffer_load_dwordx4 v3, s[20:23], s11 offen offset:{1024*j} lds')
        r.append(f's_add_u32 m0, s8, {buf*28672}')
        for j in range(4): r.append(f'buffer_load_dwordx4 v3, s[20:23], s9 offen offset:{1024*j} lds')
        r.append(f's_add_u32 m0, s8, {buf*28672+4096}')
        for j in range(3): r.append(f'buffer_load_dwordx4 v4, s[20:23], s9 offen offset:{1024*j} lds')
        r.append('s_add_u32 s9, s9, 28672')
        r.append('s_add_u32 s11, s11, 16384')
        return r
    def emit(x, st=None):
        i = a.e(x)
        return i
    def emit_dma_list(lst, st):
        pass
    for st in range(3):
        for x in dma(st):
            i = a.e(x)
            if i.kind == 'vmem': toks[st] = i
        if st == 0:
            for p in range(5):
                a.e(f'buffer_load_dword v{16+p}, v5, s[20:23], s12 offen')
                if p < 4: a.e('s_add_u32 s12, s12, 14336')
    ACC = 24; SUM = 136; SQ = 144; ONES = 152
    FA = [156, 200]; FB = [184, 228]
    a.e('s_mul_i32 s13, s7, 7168\ns_add_u32 s13, s13, 49152')
    a.e('v_add_u32 v6, s13, v3\nv_add_u32 v7, 57344, v6')
    a.e('v_lshrrev_b32 v12, 2, v2\nv_and_b32 v13, 7, v12\nv_lshlrev_b32 v12, 8, v12')
    a.e('v_and_b32 v14, 3, v2\nv_lshl_add_u32 v12, v14, 3, v12')
    a.e('s_lshl_b32 s14, s6, 2\ns_lshl_b32 s15, s7, 1\ns_or_b32 s14, s14, s15')
    for i in range(4):
        a.e(f's_xor_b32 s15, s14, {i}\nv_xor_b32 v14, s15, v13\nv_lshl_add_u32 v{8+i}, v14, 5, v12')
    for i in range(4): a.e(f'v_mov_b32 v{ONES+i}, 0x3f803f80')
    a.e('v_add_f32 v16, v16, v17\nv_add_f32 v18, v18, v19\nv_add_f32 v16, v16, v20\nv_add_f32 v16, v16, v18')
    a.e('v_add_u32 v5, 135168, v5')
    a.e('ds_write_b32 v5, v16')
    def reads(kk):
        st, ks = kk >> 1, kk & 1
        buf = st % 3; A = FA[kk & 1]; B = FB[kk & 1]
        r = []
        for i in range(4):
            for hh in range(2):
                r.append(f'ds_read_b64_tr_b16 {v(B+4*i+2*hh,2)}, v{8+i} offset:{buf*16384+ks*8192+hh*4096}')
        for j in range(7):
            if buf < 2: r.append(f'ds_read_b128 {v(A+4*j,4)}, v6 offset:{buf*28672+ks*14336+j*1024}')
            else: r.append(f'ds_read_b128 {v(A+4*j,4)}, v7 offset:{ks*14336+j*1024}')
        return r
    a.waitvm(toks[0]); a.e('s_barrier')
    for x in reads(0): a.e(x)
    for kk in range(20):
        st, ks = kk >> 1, kk & 1
        A = FA[kk & 1]; B = FB[kk & 1]
        m = []
        c = lambda r: '0' if kk == 0 else v(r, 4)
        for i in range(2):
            m.append(f'{MF} {v(SUM+4*i,4)}, {v(ONES,4)}, {v(B+4*i,4)}, {c(SUM+4*i)}')
            m.append(f'{MF} {v(SQ+4*i,4)}, {v(B+4*i,4)}, {v(B+4*i,4)}, {c(SQ+4*i)}')
        for j in range(7):
            for i in range(4):
                r = ACC + 16 * j + 4 * i
                m.append(f'{MF} {v(r,4)}, {v(A+4*j,4)}, {v(B+4*i,4)}, {c(r)}')
        fill = []
        if ks == 1 and kk < 19:
            a.e('s_waitcnt lgkmcnt(0)')
            a.waitvm(toks[st + 1]); a.e('s_barrier')
        if kk < 19: fill += reads(kk + 1)
        d = dma(st + 3) if (ks == 1 and st + 3 < 10) else []
        fill += d
        for x in interleave(m, fill, start=0):
            i = a.e(x)
            if i.kind == 'vmem': toks[st + 3] = i
    a.e('s_mov_b32 s24, 0x22222222\ns_mov_b32 s25, s24\ns_mov_b32 s26, 0x44444444\ns_mov_b32 s27, s26\ns_mov_b32 s28, 0x88888888\ns_mov_b32 s29, s28')
    a.e('v_and_b32 v12, 15, v2\nv_lshlrev_b32 v12, 3, v12')
    a.e('s_lshl_b32 s15, s14, 7\ns_add_u32 s15, s15, 136192')
    a.e('v_add_u32 v13, s15, v12')
    a.e('s_xor_b32 s15, s15, 256\nv_add_u32 v14, s15, v12')
    CSV = 156
    a.e('v_lshrrev_b32 v15, 4, v2\nv_lshlrev_b32 v15, 4, v15')
    a.e('s_mul_i32 s13, s7, 448\ns_add_u32 s13, s13, 135168\nv_add_u32 v15, s13, v15')
    for i in range(2):
        a.e(f'v_cndmask_b32 v{SUM+4*i+1}, v{SQ+4*i}, v{SQ+4*i+1}, s[24:25]')
        a.e(f'v_cndmask_b32 v{SUM+4*i+1}, v{SUM+4*i+1}, v{SQ+4*i+2}, s[26:27]')
        a.e(f'v_cndmask_b32 v{SUM+4*i+1}, v{SUM+4*i+1}, v{SQ+4*i+3}, s[28:29]')
    a.e('s_mov_b32 exec_lo, 0x00f0000f\ns_mov_b32 exec_hi, 0xf0000f00')
    for i in range(2): a.e(f'ds_write_b64 v13, {v(SUM+4*i,2)} offset:{128*i}')
    a.e('s_mov_b64 exec, -1')
    for j in range(7): a.e(f'ds_read_b128 {v(CSV+4*j,4)}, v15 offset:{64*j}')
    a.e('s_waitcnt lgkmcnt(0)\ns_barrier')
    ST = 184
    for i in range(4):
        a.e(f'ds_read_b64 {v(ST+4*i,2)}, v{13+(i>>1)} offset:{128*(i&1)}')
    a.e('s_lshr_b32 s16, s5, 1\ns_mul_i32 s16, s16, 7')
    a.e('s_and_b32 s17, s5, 1')
    a.e('s_lshl_b32 s18, s4, 1\ns_add_u32 s18, s18, s6\ns_mul_i32 s18, s18, 229376')
    a.e(f's_add_u32 s18, s18, {ACT}\ns_lshl_b32 s19, s16, 12\ns_add_u32 s18, s18, s19')
    a.e('s_lshl_b32 s19, s7, 11\ns_add_u32 s18, s18, s19')
    a.e('s_lshl_b32 s19, s17, 14\ns_add_u32 s30, s18, s19')
    a.e('s_lshl_b32 s19, s7, 3\ns_add_u32 s32, s30, s19\ns_add_u32 s32, s32, 8192')
    a.e('s_add_u32 s34, s18, s19\ns_add_u32 s34, s34, 12288\ns_lshl_b32 s19, s17, 9\ns_add_u32 s34, s34, s19')
    a.e('s_lshl_b32 s19, s7, 12\ns_add_u32 s30, s30, s19')
    for r in (30, 32, 34): a.e(f's_xor_b32 s{r+1}, s{r}, 2048')
    a.e('v_and_b32 v16, 31, v2\nv_lshlrev_b32 v16, 4, v16\nv_lshrrev_b32 v17, 5, v2\nv_lshl_add_u32 v16, v17, 10, v16')
    for i in range(4):
        t = ST + 4 * i
        a.e(f'v_mul_f32 v{t}, 0xbacccccd, v{t}')
        a.e(f'v_mul_f32 v{t+1}, 0x3acccccd, v{t+1}')
        a.e(f'v_fma_f32 v{t+1}, -v{t}, v{t}, v{t+1}\nv_max_f32 v{t+1}, 0, v{t+1}\nv_add_f32 v{t+1}, 0x3727c5ac, v{t+1}')
    for i in range(4): a.e(f'v_rsq_f32 v{ST+4*i+1}, v{ST+4*i+1}')
    for i in range(4):
        t = ST + 4 * i
        a.e(f'v_mul_f32 v{t+2}, v{t+1}, v{t+1}\nv_mul_f32 v{t+1}, 0xbfb8aa3b, v{t+1}')
    MX = 200
    a.e('s_mov_b32 s24, 0\ns_mov_b32 s25, -1')
    for p in range(2):
        a.e(f'v_cndmask_b32 v{MX+4*p+1}, v{ST+8*p+1}, v{ST+8*p+5}, s[24:25]')
        a.e(f'v_cndmask_b32 v{MX+4*p+2}, v{ST+8*p+2}, v{ST+8*p+6}, s[24:25]')
    for j in range(7):
        for i in range(4):
            r = ACC + 16 * j + 4 * i
            for h in range(2):
                a.e(f'v_pk_fma_f32 {v(r+2*h,2)}, {v(CSV+4*j+2*h,2)}, {v(ST+4*i,2)}, {v(r+2*h,2)} op_sel_hi:[1,0,1]')
    for p in range(2):
        for k in range(4):
            a.e(f'v_permlane32_swap_b32 v{ACC+96+8*p+k}, v{ACC+96+8*p+4+k}')
    TM = 208; OUT = 228
    def swiglu(G, U, st, tm, out):
        for h in range(2): a.e(f'v_pk_mul_f32 {v(tm+2*h,2)}, {v(G+2*h,2)}, {v(st,2)} op_sel:[0,1] op_sel_hi:[1,1]')
        for k in range(4): a.e(f'v_exp_f32 v{tm+k}, v{tm+k}')
        for h in range(2): a.e(f'v_pk_mul_f32 {v(G+2*h,2)}, {v(G+2*h,2)}, {v(U+2*h,2)}')
        for h in range(2): a.e(f'v_pk_add_f32 {v(tm+2*h,2)}, {v(tm+2*h,2)}, 1.0 op_sel_hi:[1,0]')
        for k in range(4): a.e(f'v_rcp_f32 v{tm+k}, v{tm+k}')
        for h in range(2): a.e(f'v_pk_mul_f32 {v(G+2*h,2)}, {v(G+2*h,2)}, {v(st+2,2)} op_sel_hi:[1,0]')
        for h in range(2): a.e(f'v_pk_mul_f32 {v(G+2*h,2)}, {v(G+2*h,2)}, {v(tm+2*h,2)}')
        for h in range(2): a.e(f'v_cvt_pk_bf16_f32 v{out+h}, v{G+2*h}, v{G+2*h+1}')
    for i in range(4):
        o = OUT + 4 * i
        for j in range(2): swiglu(ACC + 16 * j + 4 * i, ACC + 16 * (j + 3) + 4 * i, ST + 4 * i, TM + 4 * j, o + 2 * j)
        a.e(f'buffer_store_dwordx4 {v(o,4)}, v3, s[20:23], s{30+(i>>1)} offen offset:{1024*(i&1)}')
    for i in range(4):
        o = 16 + 2 + 0
        o = 244 + 2 * i
        swiglu(ACC + 32 + 4 * i, ACC + 80 + 4 * i, ST + 4 * i, TM + 4 * (i & 1), o)
        a.e(f'buffer_store_dwordx2 {v(o,2)}, v3, s[20:23], s{32+(i>>1)} offen offset:{1024*(i&1)}')
    for p in range(2):
        o = 252 + 2 * p
        swiglu(ACC + 96 + 8 * p, ACC + 96 + 8 * p + 4, MX + 4 * p, TM + 4 * p, o)
        a.e(f'buffer_store_dwordx2 {v(o,2)}, v16, s[20:23], s{34+p} offen')
    a.e('L2_end:\ns_endpgm')
    return a.text(), 256

K3_LDS = 61440 + 12288
def k3():
    a = Asm()
    a.e('s_cmp_ge_u32 s2, 256\ns_cbranch_scc1 L3_end')
    a.e('s_load_dwordx2 s[20:21], s[0:1], 96')
    a.e('s_load_dwordx2 s[16:17], s[0:1], 80')
    srd_consts(a, 20, WSEND); srd_consts(a, 16, NB_X); srd_consts(a, 8, 276480); srd_consts(a, 12, 54 * 4096)
    a.e('v_lshrrev_b32 v1, 6, v0\nv_and_b32 v2, 63, v0')
    a.e('v_readfirstlane_b32 s3, v1')
    a.e('s_and_b32 s4, s2, 1\ns_lshl_b32 s4, s4, 4\ns_bfe_u32 s5, s2, 0x20001\ns_lshl2_add_u32 s4, s5, s4\ns_bfe_u32 s5, s2, 0x20003\ns_add_u32 s4, s4, s5')
    a.e('s_lshr_b32 s5, s2, 5')
    a.e(f's_mul_i32 s6, s5, 276480\ns_add_u32 s6, s6, {WDP}')
    a.e(f's_mul_i32 s7, s4, 229376\ns_add_u32 s7, s7, {ACT}')
    a.e('v_lshlrev_b32 v3, 4, v2')
    a.e('s_mul_i32 s24, s3, 5120\nv_add_u32 v4, s24, v3\nv_add_u32 v5, 4096, v4')
    a.e('s_lshl_b32 s24, s3, 12')
    for i in range(4):
        a.e(f's_xor_b32 s25, s3, {i}\ns_lshl_b32 s25, s25, 10\ns_add_u32 s25, s25, s24\nv_add_u32 v{6+i}, s25, v3')
    a.e('s_waitcnt lgkmcnt(0)')
    srd_fix(a, 20); srd_fix(a, 16)
    a.e('s_add_u32 s8, s20, s6\ns_addc_u32 s9, s21, 0\ns_add_u32 s12, s20, s7\ns_addc_u32 s13, s21, 0')
    ACC = 16; SL = 96; NS = 4
    def loads(i):
        b = SL + 36 * (i % NS)
        r = [f's_mov_b32 s26, {20480*i}', f's_mov_b32 s27, {16384*i}']
        for k in range(4): r.append(f'buffer_load_dwordx4 {v(b+20+4*k,4)}, v{6+k}, s[12:15], s27 offen')
        for t in range(5):
            if t < 4: r.append(f'buffer_load_dwordx4 {v(b+4*t,4)}, v4, s[8:11], s26 offen offset:{1024*t}')
            else: r.append(f'buffer_load_dwordx4 {v(b+4*t,4)}, v5, s[8:11], s26 offen')
        return r
    for i in range(NS - 1):
        for x in loads(i): a.e(x)
    a.e('v_lshrrev_b32 v10, 1, v2\nv_and_b32 v11, 7, v10\nv_lshlrev_b32 v10, 8, v10')
    a.e('s_and_b32 s28, s4, 1\ns_lshl2_add_u32 s28, s28, s3\nv_xor_b32 v11, s28, v11\nv_lshl_add_u32 v10, v11, 5, v10')
    a.e('v_and_b32 v11, 1, v2\nv_lshl_add_u32 v10, v11, 4, v10')
    a.e(f's_lshr_b32 s28, s4, 1\ns_mul_i32 s28, s28, 163840\ns_mul_i32 s29, s5, 20480\ns_add_u32 s28, s28, s29\ns_add_u32 s28, s28, {HT}')
    a.e('s_mul_i32 s29, s3, 3072\ns_add_u32 s29, s29, 61440')
    for k in range(3):
        a.e(f's_add_u32 m0, s29, {1024*k}')
        rtok = a.e('buffer_load_dwordx4 v10, s[20:23], s28 offen lds')
        if k < 2: a.e('s_add_u32 s28, s28, 8192')
    a.e('v_lshrrev_b32 v11, 4, v2\nv_and_b32 v12, 15, v2')
    a.e('s_movk_i32 s30, 640\nv_mul_u32_u24 v13, s30, v11\nv_lshl_add_u32 v13, v12, 3, v13\nv_add_u32 v13, s29, v13')
    a.e('s_lshl_b32 s30, s4, 6\ns_lshl4_add_u32 s30, s3, s30\nv_add_u32 v14, s30, v12\ns_movk_i32 s30, 1280\nv_mul_u32_u24 v14, s30, v14')
    a.e('v_mul_u32_u24 v11, 40, v11\nv_add_u32 v14, v14, v11\ns_mul_i32 s31, s5, 160')
    for i in range(14):
        b = SL + 36 * (i % NS)
        m = []
        for t in range(5):
            for k in range(4):
                r = ACC + 16 * t + 4 * k
                m.append(f'{MF} {v(r,4)}, {v(b+4*t,4)}, {v(b+20+4*k,4)}, {"0" if i==0 else v(r,4)}')
        f = loads(i + NS - 1) if i + NS - 1 < 14 else []
        for x in interleave(m, f, start=0): a.e(x)
    for k in range(1, 4):
        a.e(f's_xor_b32 s25, s3, {k}\ns_mul_i32 s25, s25, 15360\ns_add_u32 s25, s25, {5120*(k-1)}\nv_add_u32 v{5+k}, s25, v3')
    a.e('s_mul_i32 s25, s3, 15360\nv_add_u32 v5, s25, v3')
    a.waitvm(rtok)
    RES = 96
    for t in range(5): a.e(f'ds_read_b64_tr_b16 {v(RES+2*t,2)}, v13 offset:{128*t}')
    for k in range(1, 4):
        for t in range(5): a.e(f'ds_write_b128 v{5+k}, {v(ACC+16*t+4*k,4)} offset:{1024*t}')
    a.e('s_mov_b32 s32, 0xffff0000')
    RF = 108
    for t in range(5):
        for h in range(2):
            a.e(f'v_lshlrev_b32 v{RF+4*t+2*h}, 16, v{RES+2*t+h}\nv_and_b32 v{RF+4*t+2*h+1}, s32, v{RES+2*t+h}')
        for h in range(2): a.e(f'v_pk_add_f32 {v(ACC+16*t+2*h,2)}, {v(ACC+16*t+2*h,2)}, {v(RF+4*t+2*h,2)}')
    a.e('s_waitcnt lgkmcnt(0)\ns_barrier')
    P = 128
    for t in range(5):
        for k in range(3): a.e(f'ds_read_b128 {v(P+12*t+4*k,4)}, v5 offset:{5120*k+1024*t}')
    O = 96
    for t in range(5):
        for h in range(2):
            a.e(f'v_pk_add_f32 {v(ACC+16*t+2*h,2)}, {v(ACC+16*t+2*h,2)}, {v(P+12*t+2*h,2)}')
            a.e(f'v_pk_add_f32 {v(P+12*t+4+2*h,2)}, {v(P+12*t+4+2*h,2)}, {v(P+12*t+8+2*h,2)}')
        for h in range(2):
            a.e(f'v_pk_add_f32 {v(ACC+16*t+2*h,2)}, {v(ACC+16*t+2*h,2)}, {v(P+12*t+4+2*h,2)}')
        for h in range(2): a.e(f'v_cvt_pk_bf16_f32 v{O+2*t+h}, v{ACC+16*t+2*h}, v{ACC+16*t+2*h+1}')
    a.e(f'buffer_store_dwordx4 {v(O,4)}, v14, s[16:19], s31 offen')
    a.e(f'buffer_store_dwordx4 {v(O+4,4)}, v14, s[16:19], s31 offen offset:16')
    a.e(f'buffer_store_dwordx2 {v(O+8,2)}, v14, s[16:19], s31 offen offset:32')
    a.e('L3_end:\ns_endpgm')
    return a.text(), 240

def build(extra_empty=0):
    ks = [('prep_kernel', k0, 448, 0), ('conv_kernel', k1, 160 + NPACK, 4 * 12928),
          ('ffn1_kernel', k2, 256, K2_LDS), (NAME + '_kernel', k3, 256, K3_LDS)]
    hdr = ['; generated by dev/gen.py: 4-kernel pipeline (transpose/prep, long conv + weight packing, gate/up GEMM, down GEMM)']
    for n, f, g, l in ks: hdr.append(f'; @launch kernel={n} grid=({g},1,1) block=(256,1,1) lds={l}')
    for i in range(extra_empty): hdr.append(f'; @launch kernel=empty_kernel grid=(256,1,1) block=(256,1,1) lds=0')
    out = '\n'.join(hdr) + '\n.amdgcn_target "amdgcn-amd-amdhsa--gfx950"\n.text\n'
    desc = '.section .rodata,"a"\n'
    if extra_empty: ks = ks + [('empty_kernel', lambda: ('  s_endpgm\n', 64), 256, 0)]
    for n, f, g, l in ks:
        body, nv = f()
        out += f'.globl {n}\n.p2align 8\n.type {n},@function\n{n}:\n{body}'
        desc += f'''.p2align 6
.amdhsa_kernel {n}
  .amdhsa_next_free_vgpr {nv}
  .amdhsa_next_free_sgpr 102
  .amdhsa_accum_offset {min(nv,256)}
  .amdhsa_group_segment_fixed_size 0
  .amdhsa_kernarg_size 104
  .amdhsa_user_sgpr_count 2
  .amdhsa_user_sgpr_kernarg_segment_ptr 1
  .amdhsa_system_sgpr_workgroup_id_x 1
  .amdhsa_float_denorm_mode_32 3
.end_amdhsa_kernel
'''
    return out + desc

if __name__ == '__main__':
    ee = int(sys.argv[2]) if len(sys.argv) > 2 else 0
    open(sys.argv[1], 'w').write(build(ee))
```

```python
from asmlib import *

def k1p(G):
    MF = G.MF; ts = G.ts; ts_end = G.ts_end; srd_consts = G.srd_consts; srd_fix = G.srd_fix
    HSC = ' sc1' if G.HSC1 else ''
    PSC = ' sc1' if G.PSC1 else ''
    a = Asm()
    XB = 81920
    a.e('s_cmp_ge_u32 s2, 256\ns_cbranch_scc1 L1_end'); ts(a, 0)
    a.e('s_load_dwordx2 s[4:5], s[0:1], 0')
    a.e('s_load_dwordx2 s[20:21], s[0:1], 96')
    a.e('s_load_dwordx2 s[16:17], s[0:1], 88')
    G.code_pf(a, 'conv_kernel')
    a.e('v_lshrrev_b32 v1, 6, v0\nv_and_b32 v2, 63, v0')
    a.e('s_and_b32 s60, s2, 7\ns_lshr_b32 s61, s2, 3')
    a.e('v_readfirstlane_b32 s3, v1')
    srd_consts(a, 20, G.WSEND); srd_consts(a, 16, 256)
    a.e('s_movk_i32 s62, 1280')
    a.e('s_cmp_ge_u32 s61, 28\ns_cbranch_scc1 L1_wd')
    a.e('s_cmp_ge_u32 s61, 8\ns_cbranch_scc1 L1_c')
    a.e('s_and_b32 s63, s3, 1\ns_lshr_b32 s64, s3, 1')
    a.e('s_lshl3_add_u32 s29, s63, 56')
    a.e('s_load_dwordx2 s[8:9], s[0:1], s29')
    srd_consts(a, 4, G.NB_X); srd_consts(a, 8, G.NB_W)
    a.e('v_and_b32 v4, 7, v2\nv_lshrrev_b32 v5, 3, v2')
    a.e('s_lshl_b32 s30, s2, 5\nv_lshl_add_u32 v6, v5, 2, s30\nv_mul_u32_u24 v6, s62, v6')
    a.e('v_xor_b32 v17, v4, v5\nv_lshl_add_u32 v6, v17, 4, v6')
    a.e('v_and_b32 v7, 28, v2\nv_lshrrev_b32 v18, 5, v2\nv_add3_u32 v7, v7, v18, s30\nv_mul_u32_u24 v7, s62, v7')
    a.e('v_and_b32 v18, 3, v2\nv_lshl_add_u32 v7, v18, 4, v7')
    a.e(f's_mul_i32 s50, s3, 10240\ns_add_u32 s50, s50, {XB}')
    a.e('s_mul_i32 s30, s3, 320\ns_lshl_b32 s31, s63, 6\ns_add_u32 s31, s31, s30')
    a.e('s_xor_b32 s32, s63, 1\ns_lshl_b32 s32, s32, 8\ns_add_u32 s32, s32, s30')
    a.e('s_waitcnt lgkmcnt(0)')
    srd_fix(a, 4)
    X = 24
    xt = []
    for r in range(4):
        for st in range(2):
            a.e(f's_add_u32 m0, s50, {2048*r+1024*st-1280*r-128*st}' if 2048*r+1024*st else 's_mov_b32 m0, s50')
            t_ = a.e(f'buffer_load_dwordx4 v6, s[4:7], s31 offen offset:{1280*r+128*st} lds')
        if r % 2 == 0:
            a.e(f's_add_u32 m0, s50, {8192+512*r-1280*r}')
            t_ = a.e(f'buffer_load_dwordx4 v7, s[4:7], s32 offen offset:{1280*r} lds')
        xt.append(t_)
    a.e('s_lshr_b32 s65, s60, 1\ns_and_b32 s66, s61, 3\ns_lshl2_add_u32 s65, s65, s66')
    a.e('s_and_b32 s66, s60, 1\ns_lshr_b32 s67, s61, 2\ns_lshl1_add_u32 s66, s66, s67')
    a.e('s_and_b32 s67, s65, 1')
    a.e('v_lshrrev_b32 v8, 4, v2\nv_and_b32 v9, 15, v2\nv_lshlrev_b32 v10, 1, v8\nv_xor_b32 v9, v9, v10')
    a.e('s_movk_i32 s33, 3456\nv_mul_u32_u24 v8, s33, v8\nv_lshl_add_u32 v8, v9, 4, v8')
    a.e('v_xor_b32 v10, 8, v9\nv_subrev_u32 v11, v9, v10\nv_lshl_add_u32 v11, v11, 4, v8')
    a.e('s_cmp_eq_u32 s65, 15\ns_cselect_b32 s34, 8, 16')
    a.e('v_mov_b32 v12, 0x7ff00000')
    a.e('v_cmp_le_u32 vcc, s34, v9\nv_cndmask_b32 v8, v8, v12, vcc')
    a.e('v_cmp_le_u32 vcc, s34, v10\nv_cndmask_b32 v9, v11, v12, vcc')
    a.e('s_lshl1_add_u32 s34, s66, s64\ns_mul_i32 s34, s34, 276480')
    a.e('s_lshr_b32 s35, s65, 1\ns_mul_i32 s35, s35, 448\ns_add_u32 s34, s34, s35\ns_mul_i32 s35, s67, 192\ns_add_u32 s34, s34, s35')
    a.e('s_mul_i32 s35, s63, 40960\ns_mul_i32 s36, s64, 20480\ns_add_u32 s36, s36, s35')
    for b in (8, 16, 20): srd_fix(a, b)
    def wdma(lo, hi):
        for gm in range(lo, hi):
            if 'W' in G.DIAG: continue
            a.e(f's_add_u32 m0, s36, {1024*gm}')
            a.e(f'buffer_load_dwordx4 v{8+(gm&1)}, s[8:11], s34 offen lds')
            if gm < 19: a.e('s_add_u32 s34, s34, 13824')
    wdma(0, G.WN0)
    S = 64
    a.e('v_mov_b32 v12, 0x3f803f80')
    for i in range(8): a.e(f'v_mov_b32 v{S+i}, 0')
    XL = XB + 40960
    a.e(f'v_lshlrev_b32 v13, 5, v4\nv_add_u32 v13, {XL}, v13\ns_lshl_b32 s37, s3, 8\nv_add_u32 v14, s37, v13')
    a.e('v_lshlrev_b32 v15, 4, v4\nv_lshl_add_u32 v16, v5, 9, v15\nv_lshl_add_u32 v15, v5, 10, v15')
    a.e(f's_mul_i32 s37, s2, {G.XSTR}\ns_add_u32 s37, s37, {G.XA}')
    a.e('s_lshl_b32 s38, s31, 6\ns_add_u32 s38, s38, s37\ns_add_u32 s39, s38, 8192\ns_lshl_b32 s40, s32, 6\ns_add_u32 s40, s40, s37')
    a.e('s_mov_b32 s41, 0x05040100\ns_mov_b32 s42, 0x07060302\ns_mov_b32 s43, 0xffff0000')
    a.e('v_lshlrev_b32 v17, 4, v17\nv_lshl_add_u32 v17, v4, 7, v17\nv_add_u32 v17, s50, v17')
    a.e('v_lshlrev_b32 v18, 3, v5\nv_lshl_add_u32 v18, v4, 6, v18\nv_add_u32 v18, s50, v18')
    for r in range(4):
        a.waitvm(xt[r])
        for st in range(2): a.e(f'ds_read_b128 {v(X+10*r+4*st,4)}, v17 offset:{2048*r+1024*st}')
        a.e(f'ds_read_b64 {v(X+10*r+8,2)}, v18 offset:{8192+512*r}')
    for r in range(4):
        for d in range(10):
            a.e(f'v_dot2c_f32_bf16 v{S+2*r}, v12, v{X+10*r+d}\nv_dot2c_f32_bf16 v{S+2*r+1}, v{X+10*r+d}, v{X+10*r+d}')
    ts(a, 1)
    for e in range(8): a.e(f'v_add_f32_dpp v{S+e}, v{S+e}, v{S+e} row_ror:8 row_mask:0xf bank_mask:0xf')
    for sw in ('v_permlane16_swap_b32', 'v_permlane32_swap_b32'):
        for e in range(8): a.e(f'v_mov_b32 v{S+8+e}, v{S+e}')
        for e in range(8): a.e(f'{sw} v{S+e}, v{S+8+e}')
        for e in range(8): a.e(f'v_add_f32 v{S+e}, v{S+e}, v{S+8+e}')
    a.e('s_mov_b64 exec, 0xff')
    a.e(f'ds_write_b128 v14, {v(S,4)}\nds_write_b128 v14, {v(S+4,4)} offset:16')
    a.e('s_mov_b64 exec, -1')
    a.e('s_waitcnt lgkmcnt(0)\ns_barrier')
    for w in range(4):
        for h in range(2): a.e(f'ds_read_b128 {v(S+8*w+4*h,4)}, v13 offset:{256*w+16*h}')
    U = 100
    for r in range(4):
        for d in range(10):
            a.e(f'v_lshlrev_b32 v{U+20*r+2*d}, 16, v{X+10*r+d}\nv_and_b32 v{U+20*r+2*d+1}, s43, v{X+10*r+d}')
    for h in range(4):
        a.e(f'v_pk_add_f32 {v(S+2*h,2)}, {v(S+2*h,2)}, {v(S+8+2*h,2)}')
        a.e(f'v_pk_add_f32 {v(S+16+2*h,2)}, {v(S+16+2*h,2)}, {v(S+24+2*h,2)}')
    for h in range(4): a.e(f'v_pk_add_f32 {v(S+2*h,2)}, {v(S+2*h,2)}, {v(S+16+2*h,2)}')
    for r in range(4):
        t = S + 2 * r
        a.e(f'v_mul_f32 v{t}, 0xbacccccd, v{t}\nv_mul_f32 v{t+1}, 0x3acccccd, v{t+1}')
    for r in range(4):
        t = S + 2 * r
        a.e(f'v_fma_f32 v{t+1}, -v{t}, v{t}, v{t+1}\nv_max_f32 v{t+1}, 0, v{t+1}\nv_add_f32 v{t+1}, 0x3727c5ac, v{t+1}')
    for r in range(4): a.e(f'v_rsq_f32 v{S+2*r+1}, v{S+2*r+1}')
    for r in range(4): a.e(f'v_mul_f32 v{S+2*r}, v{S+2*r}, v{S+2*r+1}')
    O = 180
    for d in range(10):
        for r in range(4):
            u = U + 20 * r + 2 * d
            a.e(f'v_pk_fma_f32 {v(u,2)}, {v(u,2)}, {v(S+2*r,2)}, {v(S+2*r,2)} op_sel:[0,1,0] op_sel_hi:[1,1,0]')
        for h in range(2):
            o = O + 8 * (d % 8) + 4 * h
            a.e(f'v_perm_b32 v{o}, v{X+10+d}, v{X+d}, s{41+h}\nv_perm_b32 v{o+1}, v{X+30+d}, v{X+20+d}, s{41+h}')
            a.e(f'v_cvt_pk_bf16_f32 v{o+2}, v{U+2*d+h}, v{U+20+2*d+h}\nv_cvt_pk_bf16_f32 v{o+3}, v{U+40+2*d+h}, v{U+60+2*d+h}')
            st = d >> 2; e = 2 * (d & 3) + h
            a.e(f'buffer_store_dwordx4 {v(o,4)}, v{16 if st==2 else 15}, s[20:23], s{38+st} offen offset:{128*e} sc1')
    a.e('v_and_b32 v4, 3, v2\nv_lshrrev_b32 v5, 2, v2')
    a.e('v_and_b32 v6, 7, v5\nv_lshlrev_b32 v6, 5, v6')
    a.e('v_lshlrev_b32 v5, 8, v5')
    a.e('s_add_u32 s37, s67, s64\ns_lshl_b32 s37, s37, 6')
    a.e('v_lshl_add_u32 v7, v4, 3, s37\nv_xor_b32 v20, v7, v6\nv_add3_u32 v20, v20, v5, s35')
    a.e('v_xor_b32 v21, 32, v20')
    a.e('s_lshl_b32 s37, s67, 6\ns_lshl4_add_u32 s37, s64, s37\ns_add_u32 s37, s37, 128')
    a.e('v_lshrrev_b32 v10, 1, v4\nv_and_b32 v11, 1, v4')
    a.e('v_lshl_add_u32 v7, v10, 5, s37\nv_lshl_add_u32 v7, v11, 3, v7\nv_xor_b32 v22, v7, v6\nv_add3_u32 v22, v22, v5, s35')
    a.e('s_cmp_eq_u32 s67, 1\ns_cselect_b32 s37, 16, 192\ns_lshl3_add_u32 s37, s64, s37')
    a.e('v_lshl_add_u32 v7, v11, 5, s37\nv_xor_b32 v23, v7, v6\nv_add_u32 v23, v23, v5\nv_mul_u32_u24 v10, 40960, v10\nv_add_u32 v23, v23, v10')
    a.e('v_lshlrev_b32 v3, 4, v2\nv_lshrrev_b32 v4, 4, v2\nv_lshlrev_b32 v4, 4, v4')
    a.e('v_mov_b32 v5, 1\nv_mov_b32 v6, 0\ns_lshl_b32 s44, s2, 2')
    for i in range(4): a.e(f'v_mov_b32 v{12+i}, 0x3f803f80')
    a.e(f's_mul_i32 s37, s65, 286720\ns_mul_i32 s45, s66, 71680\ns_add_u32 s37, s37, s45\ns_add_u32 s37, s37, {G.W1P}')
    a.e('s_mul_i32 s45, s64, 7\ns_mul_i32 s46, s63, 3\ns_add_u32 s45, s45, s46')
    a.e('s_lshl_b32 s46, s45, 10\ns_add_u32 s37, s37, s46')
    a.e(f's_mul_i32 s46, s66, 14336\ns_mul_i32 s47, s65, 896\ns_add_u32 s46, s46, s47\ns_lshl_b32 s47, s45, 6\ns_add_u32 s46, s46, s47\ns_add_u32 s46, s46, {G.CS}')
    a.e('s_waitcnt vmcnt(0)\ns_barrier'); ts(a, 2)
    a.e('s_cmp_lg_u32 s3, 0\ns_cbranch_scc1 L1_x2')
    a.e('s_mov_b64 exec, 1')
    a.e('buffer_store_dword v5, v6, s[16:19], s44 offen sc1')
    a.e('s_mov_b64 exec, -1')
    a.e('L1_x2:')
    if G.WN0 < 20:
        wdma(G.WN0, 20)
        a.e('s_waitcnt vmcnt(0)\ns_barrier')
    F = 24; CA = 120
    for ks in range(5):
        for t in range(3):
            for hh in range(2):
                a.e(f'ds_read_b64_tr_b16 {v(F+12*ks+4*t+2*hh,2)}, v{20+t} offset:{8192*ks+4096*hh}')
    for ks in range(5):
        for hh in range(2): a.e(f'ds_read_b64_tr_b16 {v(F+60+4*ks+2*hh,2)}, v23 offset:{8192*ks+4096*hh}')
    a.e('s_mov_b32 s47, s37')
    for ks in range(5):
        for t in range(3):
            f = v(F + 12 * ks + 4 * t, 4)
            a.e(f'buffer_store_dwordx4 {f}, v3, s[20:23], s47 offen offset:{1024*t}{PSC}')
            a.e(f'{MF} {v(CA+4*t,4)}, {f}, v[12:15], {v(CA+4*t,4) if ks else 0}')
        if ks < 4: a.e('s_add_u32 s47, s47, 14336')
    a.e('s_mov_b32 s48, 0x00010001\ns_mov_b32 s49, s48')
    a.e('s_mov_b64 exec, s[48:49]')
    for t in range(3): a.e(f'buffer_store_dwordx4 {v(CA+4*t,4)}, v4, s[20:23], s46 offen offset:{64*t}')
    a.e('s_mov_b64 exec, -1')
    a.e('s_waitcnt lgkmcnt(0)')
    a.e('s_cmp_lg_u32 s63, 0\ns_cbranch_scc1 L1_x3')
    a.e('s_add_u32 s47, s37, 6144')
    for ks in range(5):
        f = v(F + 60 + 4 * ks, 4)
        a.e(f'buffer_store_dwordx4 {f}, v3, s[20:23], s47 offen{PSC}')
        a.e(f'{MF} {v(CA+12,4)}, {f}, v[12:15], {v(CA+12,4) if ks else 0}')
        if ks < 4: a.e('s_add_u32 s47, s47, 14336')
    a.e('s_mov_b64 exec, s[48:49]')
    a.e(f'buffer_store_dwordx4 {v(CA+12,4)}, v4, s[20:23], s46 offen offset:384')
    a.e('L1_x3:')
    ts_end(a, 0, 3)
    a.e('s_endpgm')
    a.reset()
    a.e('L1_c:')
    a.e('s_load_dwordx4 s[8:11], s[0:1], 8')
    a.e('s_load_dwordx4 s[12:15], s[0:1], 24')
    a.e('s_load_dwordx2 s[30:31], s[0:1], 40')
    a.e('s_lshl_b32 s28, s61, 6\ns_sub_u32 s28, s28, 512\nv_add_u32 v3, s28, v2\nv_mul_u32_u24 v3, s62, v3')
    a.e('s_mul_i32 s28, s60, 160\ns_and_b32 s29, s3, 1\ns_mul_i32 s29, s29, 156\ns_add_u32 s28, s28, s29\nv_add_u32 v3, s28, v3')
    a.e('v_add_u32 v19, 1638400, v3')
    srd_consts(a, 24, G.NB_X)
    a.e('s_mul_i32 s63, s60, 20\ns_add_u32 s63, s63, s61\ns_sub_u32 s63, s63, 8')
    a.e('s_lshl2_add_u32 s64, s63, s3')
    a.e('s_mul_i32 s65, s3, 12928')
    a.e('s_lshl_b32 s66, s64, 12\ns_lshl_b32 s67, s63, 5')
    a.e('s_lshl_b32 s68, s64, 1\ns_and_b32 s68, s68, -4')
    a.e('v_lshlrev_b32 v4, 4, v2')
    a.e('v_subrev_u32 v5, 4, v4\nv_add_u32 v6, 1020, v4')
    a.e('v_mul_u32_u24 v7, 2560, v0\ns_lshl_b32 s69, s63, 3\nv_add_u32 v7, s69, v7')
    a.e('v_min_u32 v8, 11, v2\nv_mul_u32_u24 v9, 43, v8\nv_lshrrev_b32 v9, 7, v9')
    a.e('v_mul_u32_u24 v10, 509, v9\nv_add_u32 v8, v8, v10')
    a.e('s_lshl_b32 s70, s3, 7\nv_add_u32 v8, s70, v8\nv_mul_u32_u24 v8, s62, v8')
    a.e('s_sub_u32 s69, s69, 3840\nv_add_u32 v8, s69, v8')
    a.e('s_waitcnt lgkmcnt(0)')
    a.e('s_cmp_lt_u32 s3, 2\ns_cselect_b64 s[24:25], s[8:9], s[10:11]')
    srd_fix(a, 24)
    a.e('buffer_load_dword v255, v3, s[24:27], 0 offen')
    a.e('buffer_load_dword v253, v19, s[24:27], 0 offen')
    a.e('s_load_dwordx8 s[36:43], s[12:13], s67')
    a.e('s_load_dword s29, s[30:31], s68')
    a.e('s_mov_b64 s[4:5], s[8:9]\ns_mov_b64 s[8:9], s[10:11]')
    a.e('s_add_u32 s12, s14, s66\ns_addc_u32 s13, s15, 0')
    srd_consts(a, 4, G.NB_X); srd_consts(a, 8, G.NB_X); srd_consts(a, 12, 4096)
    for b in (4, 8, 12, 16, 20): srd_fix(a, b)
    ACC = 24; BF = 56; KR = 120; HL = 152; WK = 154; XA = 200; ET = 232
    FT = 56; PV = 72; OT = 76; DG = 20
    for c in range(4): a.e(f'buffer_load_dwordx4 {v(FT+4*c,4)}, v4, s[12:15], 0 offen offset:{1024*c}')
    a.e(f'buffer_load_dword v{PV}, v5, s[12:15], 0 offen')
    for c in range(1, 4): a.e(f'buffer_load_dword v{PV+c}, v6, s[12:15], 0 offen offset:{1024*(c-1)}')
    a.e('s_add_u32 m0, s65, 32')
    for c in range(4): dma_last = a.e(f'buffer_load_dwordx4 v4, s[12:15], 0 offen offset:{1024*c} lds')
    a.e(f'buffer_load_dwordx2 {v(HL,2)}, v8, s[4:7], 0 offen')
    for c in range(1, 4): a.e(f's_mov_b32 s{70+c}, {655360*c}')
    def gath(c):
        so = f's{70+c}' if c else '0'
        return [f'buffer_load_dwordx2 {v(KR+8*c,2)}, v7, s[4:7], {so} offen',
                f'buffer_load_dwordx2 {v(KR+8*c+2,2)}, v7, s[4:7], {so} offen offset:1280',
                f'buffer_load_dwordx2 {v(KR+8*c+4,2)}, v7, s[8:11], {so} offen',
                f'buffer_load_dwordx2 {v(KR+8*c+6,2)}, v7, s[8:11], {so} offen offset:1280']
    gl = [gath(c) for c in range(4)]
    for x in gl[0]: a.e(x)
    a.e('v_and_b32 v5, 15, v2\nv_lshrrev_b32 v6, 4, v2')
    a.e('v_add_u32 v10, 12416, v4')
    a.e('v_and_b32 v11, 1, v2\nv_lshlrev_b32 v11, 4, v11')
    a.e('v_add_u32 v12, 4160, v11')
    a.e('v_cmp_gt_u32 vcc, 32, v2\nv_cndmask_b32 v11, v12, v11, vcc')
    a.e('v_cmp_gt_u32 vcc, 30, v2\nv_cndmask_b32 v10, v11, v10, vcc')
    a.e('v_add_u32 v10, s65, v10')
    for i in range(4): a.e(f'v_mov_b32 v{OT+i}, 0')
    a.e(f'ds_write_b128 v10, {v(OT,4)}')
    a.e('v_and_b32 v11, 1, v5')
    a.e('v_cmp_eq_u32 vcc, 1, v11')
    a.e('v_mov_b32 v12, 4164\nv_mov_b32 v13, 2\nv_cndmask_b32 v12, v12, v13, vcc')
    a.e('v_lshl_add_u32 v12, v5, 1, v12\nv_lshl_add_u32 v12, v6, 4, v12\nv_add_u32 v12, s65, v12')
    a.e('v_add_u32 v13, 1024, v12\nv_add_u32 v14, 2048, v12\nv_add_u32 v15, 3072, v12')
    a.e('v_lshlrev_b32 v11, 5, v5\nv_sub_u32 v11, 8800, v11\nv_lshl_add_u32 v11, v6, 4, v11\nv_add_u32 v11, s65, v11')
    a.e('v_add_u32 v10, s65, v4')
    a.e('v_lshlrev_b32 v9, 2, v0\nv_sub_u32 v9, 9340, v9')
    a.e(f'v_lshrrev_b32 v16, 1, v5\ns_mov_b32 s32, {G.XSTR}\nv_mul_lo_u32 v16, v16, s32')
    a.e('v_and_b32 v17, 1, v5\nv_lshl_add_u32 v17, v17, 2, v6\nv_lshl_add_u32 v16, v17, 4, v16')
    a.e(f's_lshl_b32 s33, s64, 7\ns_add_u32 s33, s33, {G.XA}')
    a.e('v_lshlrev_b32 v18, 2, v2')
    a.e('v_and_b32 v17, 1, v6\nv_lshlrev_b32 v17, 1, v17\nv_lshrrev_b32 v19, 3, v5\nv_add_u32 v17, v17, v19')
    a.e('s_mov_b32 s34, 163840\nv_mul_lo_u32 v17, v17, s34')
    a.e('s_and_b32 s34, s64, 7\nv_and_b32 v19, 7, v5\nv_xor_b32 v19, s34, v19\nv_lshl_add_u32 v17, v19, 5, v17')
    a.e('v_lshrrev_b32 v19, 1, v6\nv_lshl_add_u32 v17, v19, 4, v17')
    a.e(f's_lshl_b32 s34, s64, 8\ns_add_u32 s34, s34, {G.HT}\ns_mov_b32 s35, 0xffff0000')
    for x in gl[1][:G.G1PRE]: a.e(x)
    for ch in range(4):
        for h in range(2):
            a.e(f's_lshl_b32 s{44+4*ch+2*h}, s{36+2*ch+h}, 16\ns_and_b32 s{45+4*ch+2*h}, s{36+2*ch+h}, s35')
    a.e('v_lshlrev_b32 v3, 3, v6\nv_add_u32 v3, v3, v5\nv_sub_u32 v3, 15, v3')
    a.e('s_and_b32 s28, s64, 1\ns_lshl_b32 s28, s28, 4\ns_lshr_b32 s29, s29, s28\ns_and_b32 s29, s29, 0xffff')
    a.e('v_and_b32 v19, 1, v3\nv_lshlrev_b32 v19, 4, v19\nv_lshlrev_b32 v19, v19, s29')
    a.e('v_lshrrev_b32 v3, 1, v3')
    for i in range(4):
        a.e(f'v_cmp_eq_u32 vcc, {i}, v3\nv_cndmask_b32 v{DG+i}, 0, v19, vcc')
    for c in range(4):
        o = OT + 4 + 4 * c
        a.e(f'v_alignbit_b32 v{o}, v{FT+4*c}, v{PV+c}, 16')
        for i in range(1, 4): a.e(f'v_alignbit_b32 v{o+i}, v{FT+4*c+i}, v{FT+4*c+i-1}, 16')
        a.e(f'ds_write_b128 v10, {v(o,4)} offset:{4160+32+1024*c}')
    a.waitvm(dma_last); ts(a, 1)
    AR = lambda p, q: 32 * q + 4 * p
    rest1 = gl[1][G.G1PRE:]
    def areads(q):
        r_ = []
        for p in range(8):
            o = 128 * (p & 1) + 16 * q; r = AR(p, q)
            r_.append(f'ds_read2_b32 a[{r}:{r+1}], v{12+(p>>1)} offset0:{o} offset1:{o+1}')
            r_.append(f'ds_read2_b32 a[{r+2}:{r+3}], v{12+(p>>1)} offset0:{o+2} offset1:{o+3}')
        return r_
    for q in range(G.NPRE):
        for x in areads(q): a.e(x)
        if rest1: a.e(rest1.pop(0))
    for x in rest1: a.e(x)
    def valu(c):
        K0 = KR + 8 * c; K1 = K0 + 2; V0 = K0 + 4; V1 = K0 + 6
        P0 = WK; P1 = WK + 2; Q1 = WK + 4; U = WK + 6; UV = U + 20; AC = UV + 8; O = AC + 8
        r = []
        for dst, rr in ((Q1, 0), (P0, 1), (P1, 2)):
            for h in range(2):
                sh = 3 * c + rr
                if sh: r.append(f'v_mov_b32_dpp v{dst+h}, v{HL+h} row_shl:{sh} row_mask:0xf bank_mask:0xf')
                else: r.append(f'v_mov_b32 v{dst+h}, v{HL+h}')
        for h in range(2):
            r.append(f'v_mov_b32_dpp v{P1+h}, v{K1+h} wave_shr:1 row_mask:0xf bank_mask:0xf')
            r.append(f'v_mov_b32_dpp v{P0+h}, v{K0+h} wave_shr:1 row_mask:0xf bank_mask:0xf')
        def unp(dst, src):
            for h in range(2):
                r.append(f'v_lshlrev_b32 v{dst+2*h}, 16, v{src+h}')
                r.append(f'v_and_b32 v{dst+2*h+1}, s35, v{src+h}')
        unp(U + 16, K1); unp(U + 12, K0)
        for h in range(2):
            r.append(f'v_mov_b32_dpp v{Q1+h}, v{P1+h} wave_shr:1 row_mask:0xf bank_mask:0xf')
        unp(U + 8, P1); unp(U + 4, P0); unp(U, Q1)
        for j in range(4):
            for o in (1, 0):
                for ch in range(4):
                    src = U + 4 * (3 + o - j) + ch
                    if j == 0: r.append(f'v_mul_f32 v{AC+4*o+ch}, s{44+4*ch}, v{src}')
                    else: r.append(f'v_fmac_f32 v{AC+4*o+ch}, s{44+4*ch+j}, v{src}')
        unp(UV, V0); unp(UV + 4, V1)
        for i in range(8): r.append(f'v_mul_f32 v{AC+i}, v{AC+i}, v{UV+i}')
        for ch in range(4): r.append(f'v_cvt_pk_bf16_f32 v{O+ch}, v{AC+4+ch}, v{AC+ch}')
        for ch in range(4): r.append(f'ds_write_b32 v9, v{O+ch} offset:{12928*ch+1024*(3-c)}')
        return r
    def breads(c):
        r = []
        for q in range(8):
            for tt in range(2):
                t = 2 * c + tt
                r.append(f'ds_read_b128 {v(BF+8*q+4*tt,4)}, v11 offset:{512*(7-t)+64*q}')
        return r
    started = set()
    def mf(acc, A, B):
        c = v(ACC + 4 * acc, 4) if acc in started else '0'
        started.add(acc)
        return f'{MF} {v(ACC+4*acc,4)}, {A}, {B}, {c}'
    def mfmas(c):
        m = []
        for q in range(8):
            for tt in range(2):
                t = 2 * c + tt; B = v(BF + 8 * q + 4 * tt, 4)
                if q == 0: m.append(mf(t, v(DG, 4), B))
                for p in range(8 - t):
                    m.append(mf(t + p, f'a[{AR(p,q)}:{AR(p,q)+3}]', B))
        return m
    def epi(pr):
        r = []
        for b in range(2):
            jt = 2 * pr + b; t = ET + 8 * b; x = XA + 4 * jt
            for h in range(4):
                r.append(f'v_lshlrev_b32 v{t+2*h}, 16, v{x+h}')
                r.append(f'v_and_b32 v{t+2*h+1}, s35, v{x+h}')
            for k in range(4): r.append(f'v_fmac_f32 v{t+k}, v{t+4+k}, v{ACC+4*jt+k}')
        o = ET + 16 + 4 * (pr & 1)
        for b in range(2):
            t = ET + 8 * b
            r.append(f'v_cvt_pk_bf16_f32 v{o+2*b}, v{t}, v{t+1}')
            r.append(f'v_cvt_pk_bf16_f32 v{o+2*b+1}, v{t+2}, v{t+3}')
        r.append(f'v_permlane16_swap_b32 v{o}, v{o+2}')
        r.append(f'v_permlane16_swap_b32 v{o+1}, v{o+3}')
        r.append(f'buffer_store_dwordx4 {v(o,4)}, v17, s[20:23], s34 offen{HSC}')
        if pr < 3: r.append('s_add_u32 s34, s34, 655360')
        return r
    def spread(m, items):
        out = []; items = sorted(items, key=lambda z: z[0]); k = 0
        for n, x in enumerate(m):
            out.append(x)
            while k < len(items) and items[k][0] <= n: out += items[k][1]; k += 1
        while k < len(items): out += items[k][1]; k += 1
        return out
    def emit(lst):
        for x in lst:
            if callable(x): x()
            else: a.e(x)
    emit(valu(0))
    a.e('s_waitcnt lgkmcnt(0)\ns_barrier'); ts(a, 2)
    polltok = []
    def poll_issue(): polltok.append(a.e('buffer_load_dword v19, v18, s[16:19], 0 offen sc1'))
    def poll_check():
        a.e('s_cmp_lg_u32 s3, 0\ns_cbranch_scc1 L1_back')
        a.e('v_cmp_ne_u32 vcc, 0, v19')
        a.e('s_nop 1\ns_cmp_eq_u64 vcc, -1\ns_cbranch_scc0 L1_slow')
        a.e('L1_back:')
    xal = []
    for jt in range(8):
        xal.append([f'buffer_load_dwordx4 {v(XA+4*jt,4)}, v16, s[20:23], s33 offen sc1'] + ([f's_add_u32 s33, s33, {8*G.XSTR}'] if jt < 7 else []))
    for c in range(4):
        br = breads(c); m = mfmas(c); items = []
        if c == G.POLLC + 1: emit(sum(xal, []))
        emit(br[:4])
        if c == 0:
            for q in range(8):
                lst = br[2*q+4:2*q+6] + (areads(q + G.NPRE) if q + G.NPRE < 8 else [])
                for i, x in enumerate(lst): items.append((15 * q + i * 15 // max(len(lst), 15), [x]))
            ld = gl[2] + gl[3]
            for i, x in enumerate(ld): items.append((G.LD0 + G.LDS_ * i, [x]))
        else:
            for i, x in enumerate(br[4:]): items.append((i, [x]))
        if c == G.POLLC: items.append((max(0, len(m) - G.POLLD), [poll_issue]))
        if c < 3:
            va = valu(c + 1)
            st = len(m) - (len(va) + 1) // 2 - 1
            st = max(st, 12)
            for i in range(0, len(va), 2): items.append((st + i // 2, va[i:i + 2]))
        if c == 3:
            ep = epi(0) + epi(1) + epi(2)
            e0 = 12 if G.POLLC < 2 else 26
            for i in range(0, len(ep), 2): items.append((e0 + i // 2, ep[i:i + 2]))
        emit(spread(m, items))
        if c == G.POLLC: poll_check()
        if c < 3: a.e('s_waitcnt lgkmcnt(0)\ns_barrier')
        if c < 3: ts(a, 3 + c)
    emit(epi(3))
    ts_end(a, 0, 6)
    a.e('s_endpgm')
    a.reset()
    a.e(f'L1_slow:\ns_mov_b32 s28, {G.SPINMAX}')
    a.e('L1_spin:')
    if G.SLP: a.e(f's_sleep {G.SLP}')
    a.e('buffer_load_dword v19, v18, s[16:19], 0 offen sc1')
    a.e('s_sub_u32 s28, s28, 1')
    a.e('s_waitcnt vmcnt(0)')
    a.e('s_cbranch_scc1 L1_back')
    a.e('v_cmp_ne_u32 vcc, 0, v19')
    a.e('s_nop 1\ns_cmp_eq_u64 vcc, -1\ns_cbranch_scc0 L1_spin')
    a.e('s_branch L1_back')
    a.reset()
    a.e('L1_wd:')
    a.e('s_load_dwordx2 s[8:9], s[0:1], 72')
    srd_consts(a, 8, G.NB_W)
    a.e('s_sub_u32 s63, s2, 224')
    for i in range(5):
        a.e(f'v_add_u32 v10, {64*i}, v2\nv_mul_u32_u24 v11, 6554, v10\nv_lshrrev_b32 v11, 16, v11')
        a.e(f'v_mul_u32_u24 v11, 1120, v11\nv_lshl_add_u32 v{4+i}, v10, 4, v11')
    a.e('s_lshr_b32 s64, s3, 1\ns_lshl1_add_u32 s64, s63, s64')
    a.e('s_and_b32 s65, s3, 1')
    a.e('s_mul_i32 s30, s64, 40960\ns_mul_i32 s31, s65, 640\ns_add_u32 s30, s30, s31')
    a.e('s_mul_i32 s31, s3, 20480')
    a.e('v_lshlrev_b32 v12, 4, v2')
    a.e('s_waitcnt lgkmcnt(0)')
    for b in (8, 20): srd_fix(a, b)
    a.e('s_cmp_ge_u32 s63, 27\ns_cbranch_scc1 L1_z')
    tk = []
    for un in range(4):
        for i in range(5):
            a.e(f's_add_u32 m0, s31, {5120*un+1024*i}')
            t_ = a.e(f'buffer_load_dwordx4 v{4+i}, s[8:11], s30 offen lds' if 'D' not in G.DIAG else 's_nop 0')
        tk.append(t_)
        if un < 3: a.e('s_add_u32 s30, s30, 160')
    a.e('v_lshrrev_b32 v10, 2, v2\nv_mul_u32_u24 v10, 160, v10\nv_and_b32 v11, 3, v2\nv_mul_u32_u24 v11, 40, v11\nv_add3_u32 v10, v10, v11, s31')
    a.e('v_add_u32 v13, 4096, v12')
    a.e(f's_mul_i32 s32, s65, {4*276480}\ns_mul_i32 s33, s64, 5120\ns_add_u32 s32, s32, s33\ns_add_u32 s32, s32, {G.WDP}')
    F = 24
    for un in range(4):
        a.waitvm(tk[un])
        if un == 0: ts(a, 1)
        for t in range(5):
            for hh in range(2):
                a.e(f'ds_read_b64_tr_b16 {v(F+20*un+4*t+2*hh,2)}, v10 offset:{5120*un+2560*hh+8*t}')
        for t in range(5):
            if t < 4: a.e(f'buffer_store_dwordx4 {v(F+20*un+4*t,4)}, v12, s[20:23], s32 offen offset:{1024*t}{PSC}')
            else: a.e(f'buffer_store_dwordx4 {v(F+20*un+4*t,4)}, v13, s[20:23], s32 offen{PSC}')
        if un < 3: a.e('s_add_u32 s32, s32, 276480')
    ts(a, 2)
    ts_end(a, 0, 3)
    a.e('s_endpgm')
    a.reset()
    a.e('L1_z:')
    a.e(f's_sub_u32 s63, s63, 27\ns_lshl2_add_u32 s63, s63, s3\ns_lshl_b32 s63, s63, 12\ns_add_u32 s63, s63, {G.PST}')
    for i in range(4): a.e(f'v_mov_b32 v{24+i}, 0')
    for i in range(4): a.e(f'buffer_store_dwordx4 v[24:27], v12, s[20:23], s63 offen offset:{1024*i}')
    ts(a, 1); ts(a, 2)
    ts_end(a, 0, 3)
    a.e('L1_end:\ns_endpgm')
    return a.text(), 512
```

```python
import sys
from asmlib import *
import k1p as K1P

NAME = 'sequential_preLN__ssm_conv_h3__swiglu_ffn__prompt'
def al(x, a): return (x + a - 1) // a * a
XSTR = 82048
XA = 0
HT = al(XA + 64 * XSTR, 4096)
W1P = HT + 2621440
WDP = W1P + 16 * 20 * 14 * 1024
CS = WDP + 8 * 54 * 5 * 1024
ACT = al(CS + 4 * 14336, 4096)
PST = ACT + 32 * 56 * 4 * 1024
FL = PST + 65536
WSEND = FL + 16384
HSC1 = 0
PSC1 = 0
G1PRE = 2
LD0 = 8
LDS_ = 12
NPRE = 2
POLLC = 2
POLLD = 40
CPF = 1
WSOFF = 0
WN0 = 20
SLP = 0
CPF2 = 1
NB_X = 2621440
NB_W = 2211840
LOG2E = 0x3fb8aa3b
MF = 'v_mfma_f32_16x16x32_bf16'

TSON = False
PF2 = False
DIAG = ''
DSP = 5
DOFF = 3
TSB = WSEND
def ts(a, i):
    if TSON:
        a.e(f's_memrealtime s[{80+2*i}:{81+2*i}]')
        if i in (1, 2): a.e(f's_memtime s[{72+2*i}:{73+2*i}]')
def ts_end(a, kid, n):
    if not TSON: return
    ts(a, n)
    a.e('s_waitcnt vmcnt(0) lgkmcnt(0)')
    ts(a, n + 1)
    a.e('s_getreg_b32 s98, hwreg(HW_REG_XCC_ID)\ns_getreg_b32 s99, hwreg(HW_REG_HW_ID)')
    a.e('s_mov_b64 exec, 1')
    a.e('v_readfirstlane_b32 s79, v0')
    a.e('s_lshr_b32 s79, s79, 6\ns_lshl2_add_u32 s79, s2, s79\ns_lshl_b32 s79, s79, 6')
    a.e(f's_add_u32 s79, s79, {TSB + kid * 131072}')
    a.e('s_waitcnt lgkmcnt(0)')
    for i in range(8): a.e(f'v_mov_b32 v{4+i}, s{80+2*i}' if i < n + 2 else f'v_mov_b32 v{4+i}, 0')
    a.e('v_mov_b32 v12, s98\nv_mov_b32 v13, s99\nv_mov_b32 v14, 0\ns_sub_u32 s76, s76, s74\nv_mov_b32 v15, s76\nv_mov_b32 v1, 0')
    a.e('s_mov_b32 s22, 0x10000000')
    for i in range(3): a.e(f'buffer_store_dwordx4 v[{4+4*i}:{7+4*i}], v1, s[20:23], s79 offen offset:{16*i}')

def code_pf(a, label):
    if not CPF: return
    a.e('s_getpc_b64 s[56:57]')
    a.e(f'Lpc_{label}:')
    a.e(f's_mov_b32 s58, Lcode_end-Lpc_{label}\ns_mov_b32 s59, 0x20000\ns_and_b32 s57, s57, 0xffff')
    a.e('v_lshlrev_b32 v254, 7, v0')
    a.e('buffer_load_dword v254, v254, s[56:59], 0 offen')

def srd_consts(a, base, size):
    a.e(f's_mov_b32 s{base+2}, {size}')
    a.e(f's_mov_b32 s{base+3}, 0x20000')
def srd_fix(a, base):
    if base == 20 and WSOFF: a.e(f's_add_u32 s20, s20, {WSOFF}\ns_addc_u32 s21, s21, 0')
    a.e(f's_and_b32 s{base+1}, s{base+1}, 0xffff')

RESL = 135168 + 2048
K23_LDS = RESL + 12288
WPRO = 0
WLOOP = 33
WK0 = 14
SPINMAX = 200000
def k23():
    a = Asm()
    a.e('s_cmp_ge_u32 s2, 256\ns_cbranch_scc1 L2_end'); ts(a, 0)
    a.e('s_load_dwordx2 s[20:21], s[0:1], 96')
    a.e('s_load_dwordx2 s[48:49], s[0:1], 80')
    if CPF2: code_pf(a, 'k23')
    srd_consts(a, 20, WSEND)
    a.e('v_lshrrev_b32 v1, 6, v0\nv_and_b32 v2, 63, v0')
    a.e('v_readfirstlane_b32 s3, v1')
    a.e('s_and_b32 s4, s2, 1\ns_lshl_b32 s4, s4, 3\ns_bfe_u32 s5, s2, 0x30003\ns_add_u32 s4, s4, s5')
    a.e('s_bfe_u32 s5, s2, 0x20001\ns_lshl_b32 s5, s5, 2\ns_lshr_b32 s6, s2, 6\ns_add_u32 s5, s5, s6')
    a.e('s_lshr_b32 s6, s3, 1\ns_and_b32 s7, s3, 1')
    a.e('v_lshlrev_b32 v3, 4, v2\nv_add_u32 v4, 4096, v3')
    a.e('s_mul_i32 s8, s3, 7168')
    a.e(f's_mul_i32 s9, s5, 286720\ns_add_u32 s9, s9, s8\ns_add_u32 s9, s9, {W1P}')
    a.e('s_add_u32 s8, s8, 49152')
    a.e('s_lshl_b32 s10, s3, 12')
    a.e(f's_mul_i32 s11, s4, 163840\ns_add_u32 s11, s11, s10\ns_add_u32 s11, s11, {HT}')
    a.e(f's_mul_i32 s12, s5, 896\ns_add_u32 s12, s12, {CS}')
    a.e('v_min_u32 v5, 223, v0\nv_lshlrev_b32 v5, 2, v5')
    a.e('s_waitcnt lgkmcnt(0)')
    srd_fix(a, 20)
    toks = {}
    def dma(st):
        buf = st % 3
        r = []
        r.append(f's_add_u32 m0, s10, {buf*16384}')
        for j in range(4): r.append(f'buffer_load_dwordx4 v3, s[20:23], s11 offen offset:{1024*j} lds')
        r.append(f's_add_u32 m0, s8, {buf*28672}')
        for j in range(4): r.append(f'buffer_load_dwordx4 v3, s[20:23], s9 offen offset:{1024*j} lds')
        r.append(f's_add_u32 m0, s8, {buf*28672+4096}')
        for j in range(3): r.append(f'buffer_load_dwordx4 v4, s[20:23], s9 offen offset:{1024*j} lds')
        r.append('s_add_u32 s9, s9, 28672')
        r.append('s_add_u32 s11, s11, 16384')
        return r
    def dma_groups(st):
        g = []; cur = []
        for x in dma(st):
            if x.startswith('s_add_u32 m0') or x.startswith('buffer'):
                cur.append(x)
                if x.startswith('buffer'): g.append(cur); cur = []
            else: g[-1].append(x)
        return g
    pend = []; pst = None
    for st in range(3):
        for x in dma(st):
            i = a.e(x)
            if i.kind == 'vmem': toks[st] = i
        if st == 0:
            for p in range(4):
                a.e(f'buffer_load_dword v{16+p}, v5, s[20:23], s12 offen')
                if p < 3: a.e('s_add_u32 s12, s12, 14336')
    a.e('s_and_b32 s52, s2, 1\ns_lshl_b32 s52, s52, 4\ns_bfe_u32 s53, s2, 0x20001\ns_lshl2_add_u32 s52, s53, s52\ns_bfe_u32 s53, s2, 0x20003\ns_add_u32 s52, s52, s53')
    a.e('s_lshr_b32 s53, s2, 5')
    srd_consts(a, 48, NB_X); srd_consts(a, 40, 276480); srd_consts(a, 44, 54 * 4096); srd_fix(a, 48)
    a.e(f's_mul_i32 s55, s53, 276480\ns_add_u32 s55, s55, {WDP}')
    a.e(f's_mul_i32 s56, s52, 229376\ns_add_u32 s56, s56, {ACT}')
    a.e('s_add_u32 s40, s20, s55\ns_addc_u32 s41, s21, 0\ns_add_u32 s44, s20, s56\ns_addc_u32 s45, s21, 0')
    a.e('s_mul_i32 s54, s3, 5120')
    a.e('v_lshrrev_b32 v21, 1, v2\nv_and_b32 v22, 7, v21\nv_lshlrev_b32 v21, 8, v21')
    a.e('s_and_b32 s55, s52, 1\ns_lshl2_add_u32 s55, s55, s3\nv_xor_b32 v22, s55, v22\nv_lshl_add_u32 v21, v22, 5, v21')
    a.e('v_and_b32 v22, 1, v2\nv_lshl_add_u32 v21, v22, 4, v21')
    a.e(f's_lshr_b32 s55, s52, 1\ns_mul_i32 s55, s55, 163840\ns_mul_i32 s56, s53, 20480\ns_add_u32 s55, s55, s56\ns_add_u32 s55, s55, {HT}')
    a.e(f's_mul_i32 s57, s3, 3072\ns_add_u32 s57, s57, {RESL}')
    for k in range(3):
        a.e(f's_add_u32 m0, s57, {1024*k}')
        a.e('buffer_load_dwordx4 v21, s[20:23], s55 offen lds')
        if k < 2: a.e('s_add_u32 s55, s55, 8192')
    def wreg(i, t):
        n = 5 * i + t
        if n < 64: return f'a[{4*n}:{4*n+3}]'
        if n < 69: return v(136 + 4 * (n - 64), 4)
        return v(216, 4)
    wl = []
    for i in range(14):
        for t in range(5):
            g = [f'buffer_load_dwordx4 {wreg(i,t)}, v{3 if t<4 else 4}, s[40:43], s54 offen' + (f' offset:{1024*t}' if 0 < t < 4 else '')]
            if t == 4: g.append('s_add_u32 s54, s54, 20480')
            wl.append(g)
    for _ in range(WPRO):
        for x in wl.pop(0): a.e(x)
    ACC = 24; SUM = 136; SQ = 144; ONES = 152
    FA = [156, 200]; FB = [184, 228]
    a.e('s_mul_i32 s13, s7, 7168\ns_add_u32 s13, s13, 49152')
    a.e('v_add_u32 v6, s13, v3\nv_add_u32 v7, 57344, v6')
    a.e('v_lshrrev_b32 v12, 2, v2\nv_and_b32 v13, 7, v12\nv_lshlrev_b32 v12, 8, v12')
    a.e('v_and_b32 v14, 3, v2\nv_lshl_add_u32 v12, v14, 3, v12')
    a.e('s_lshl_b32 s14, s6, 2\ns_lshl_b32 s15, s7, 1\ns_or_b32 s14, s14, s15')
    for i in range(4):
        a.e(f's_xor_b32 s15, s14, {i}\nv_xor_b32 v14, s15, v13\nv_lshl_add_u32 v{8+i}, v14, 5, v12')
    for i in range(4): a.e(f'v_mov_b32 v{ONES+i}, 0x3f803f80')
    a.e('v_add_f32 v16, v16, v17\nv_add_f32 v18, v18, v19\nv_add_f32 v16, v16, v18')
    a.e('v_add_u32 v5, 135168, v5')
    a.e('ds_write_b32 v5, v16')
    def reads(kk):
        st, ks = kk >> 1, kk & 1
        buf = st % 3; A = FA[kk & 1]; B = FB[kk & 1]
        r = []
        for i in range(4):
            for hh in range(2):
                r.append(f'ds_read_b64_tr_b16 {v(B+4*i+2*hh,2)}, v{8+i} offset:{buf*16384+ks*8192+hh*4096}')
        for j in range(7):
            if buf < 2: r.append(f'ds_read_b128 {v(A+4*j,4)}, v6 offset:{buf*28672+ks*14336+j*1024}')
            else: r.append(f'ds_read_b128 {v(A+4*j,4)}, v7 offset:{ks*14336+j*1024}')
        return r
    a.waitvm(toks[0]); a.e('s_barrier'); ts(a, 1)
    for x in reads(0): a.e(x)
    nwl = WLOOP
    for kk in range(20):
        st, ks = kk >> 1, kk & 1
        A = FA[kk & 1]; B = FB[kk & 1]
        m = []
        c = lambda r: '0' if kk == 0 else v(r, 4)
        for i in range(2):
            m.append(f'{MF} {v(SUM+4*i,4)}, {v(ONES,4)}, {v(B+4*i,4)}, {c(SUM+4*i)}')
            m.append(f'{MF} {v(SQ+4*i,4)}, {v(B+4*i,4)}, {v(B+4*i,4)}, {c(SQ+4*i)}')
        for j in range(7):
            for i in range(4):
                r = ACC + 16 * j + 4 * i
                m.append(f'{MF} {v(r,4)}, {v(A+4*j,4)}, {v(B+4*i,4)}, {c(r)}')
        fill = []
        if ks == 1 and kk < 19:
            a.e('s_waitcnt lgkmcnt(0)')
            a.waitvm(toks[st + 1]); a.e('s_barrier')
        if kk < 19: fill += reads(kk + 1)
        if ks == 1: pend = dma_groups(st + 3) if st + 3 < 10 else []; pst = st + 3
        seq = interleave(m, fill, start=0)
        out = []; nm = 0
        quota = -(-nwl // (20 - kk)) if kk >= WK0 else 0
        wsp = max(1, 32 // quota) if quota else 0
        for x in seq:
            out.append(x)
            if x.startswith(MF):
                nm += 1
                if nm % DSP == DOFF and pend and (ks == 0 or len(pend) > 5): out += pend.pop(0)
                if quota and nm % wsp == wsp // 2 and len(wl) > 6:
                    out += wl.pop(0); quota -= 1; nwl -= 1
        if ks == 0:
            while pend: out += pend.pop(0)
        for x in out:
            i = a.e(x)
            if i.kind == 'vmem' and i.islds: toks[pst] = i
    ts(a, 2)
    a.e('s_mov_b32 s24, 0x22222222\ns_mov_b32 s25, s24\ns_mov_b32 s26, 0x44444444\ns_mov_b32 s27, s26\ns_mov_b32 s28, 0x88888888\ns_mov_b32 s29, s28')
    a.e('v_and_b32 v12, 15, v2\nv_lshlrev_b32 v12, 3, v12')
    a.e('s_lshl_b32 s15, s14, 7\ns_add_u32 s15, s15, 136192')
    a.e('v_add_u32 v13, s15, v12')
    a.e('s_xor_b32 s15, s15, 256\nv_add_u32 v14, s15, v12')
    CSV = 156
    a.e('v_lshrrev_b32 v15, 4, v2\nv_lshlrev_b32 v15, 4, v15')
    a.e('s_mul_i32 s13, s7, 448\ns_add_u32 s13, s13, 135168\nv_add_u32 v15, s13, v15')
    for i in range(2):
        a.e(f'v_cndmask_b32 v{SUM+4*i+1}, v{SQ+4*i}, v{SQ+4*i+1}, s[24:25]')
        a.e(f'v_cndmask_b32 v{SUM+4*i+1}, v{SUM+4*i+1}, v{SQ+4*i+2}, s[26:27]')
        a.e(f'v_cndmask_b32 v{SUM+4*i+1}, v{SUM+4*i+1}, v{SQ+4*i+3}, s[28:29]')
    a.e('s_mov_b32 exec_lo, 0x00f0000f\ns_mov_b32 exec_hi, 0xf0000f00')
    for i in range(2): a.e(f'ds_write_b64 v13, {v(SUM+4*i,2)} offset:{128*i}')
    a.e('s_mov_b64 exec, -1')
    for j in range(7): a.e(f'ds_read_b128 {v(CSV+4*j,4)}, v15 offset:{64*j}')
    a.e('s_waitcnt lgkmcnt(0)\ns_barrier')
    ST = 184
    for i in range(4):
        a.e(f'ds_read_b64 {v(ST+4*i,2)}, v{13+(i>>1)} offset:{128*(i&1)}')
    while wl:
        for x in wl.pop(0): a.e(x)
    a.e('s_lshr_b32 s16, s5, 1\ns_mul_i32 s16, s16, 7')
    a.e('s_and_b32 s17, s5, 1')
    a.e('s_lshl_b32 s18, s4, 1\ns_add_u32 s18, s18, s6\ns_mul_i32 s18, s18, 229376')
    a.e(f's_add_u32 s18, s18, {ACT}\ns_lshl_b32 s19, s16, 12\ns_add_u32 s18, s18, s19')
    a.e('s_lshl1_add_u32 s19, s17, s7\ns_lshl_b32 s19, s19, 8\ns_add_u32 s34, s18, s19\ns_add_u32 s34, s34, 12288')
    a.e('s_lshl_b32 s35, s7, 11\ns_add_u32 s18, s18, s35')
    a.e('s_lshl_b32 s19, s17, 14\ns_add_u32 s30, s18, s19')
    a.e('s_lshl_b32 s19, s7, 9\ns_add_u32 s32, s30, s19\ns_add_u32 s32, s32, 8192')
    a.e('s_lshl_b32 s19, s7, 12\ns_add_u32 s30, s30, s19')
    for r in (30, 32): a.e(f's_xor_b32 s{r+1}, s{r}, 2048')
    a.e('v_and_b32 v16, 31, v2\nv_lshlrev_b32 v16, 4, v16\nv_lshrrev_b32 v17, 5, v2\nv_lshl_add_u32 v16, v17, 10, v16')
    a.e('v_and_b32 v17, 0x100, v16\nv_xor_b32 v18, v16, v17\nv_lshl_or_b32 v17, v17, 3, v18\nv_xor_b32 v17, s35, v17')
    for i in range(4):
        t = ST + 4 * i
        a.e(f'v_mul_f32 v{t}, 0xbacccccd, v{t}')
        a.e(f'v_mul_f32 v{t+1}, 0x3acccccd, v{t+1}')
        a.e(f'v_fma_f32 v{t+1}, -v{t}, v{t}, v{t+1}\nv_max_f32 v{t+1}, 0, v{t+1}\nv_add_f32 v{t+1}, 0x3727c5ac, v{t+1}')
    for i in range(4): a.e(f'v_rsq_f32 v{ST+4*i+1}, v{ST+4*i+1}')
    for i in range(4):
        t = ST + 4 * i
        a.e(f'v_mul_f32 v{t+2}, v{t+1}, v{t+1}\nv_mul_f32 v{t+1}, 0xbfb8aa3b, v{t+1}')
    MX = 200
    a.e('s_mov_b32 s24, 0\ns_mov_b32 s25, -1')
    for p in range(2):
        a.e(f'v_cndmask_b32 v{MX+4*p+1}, v{ST+8*p+1}, v{ST+8*p+5}, s[24:25]')
        a.e(f'v_cndmask_b32 v{MX+4*p+2}, v{ST+8*p+2}, v{ST+8*p+6}, s[24:25]')
    for j in range(7):
        for i in range(4):
            r = ACC + 16 * j + 4 * i
            for h in range(2):
                a.e(f'v_pk_fma_f32 {v(r+2*h,2)}, {v(CSV+4*j+2*h,2)}, {v(ST+4*i,2)}, {v(r+2*h,2)} op_sel_hi:[1,0,1]')
    for p in range(2):
        for k in range(4):
            a.e(f'v_permlane32_swap_b32 v{ACC+96+8*p+k}, v{ACC+96+8*p+4+k}')
    TM = 208; OUT = 228
    def swiglu(G, U, st, tm, out):
        for h in range(2): a.e(f'v_pk_mul_f32 {v(tm+2*h,2)}, {v(G+2*h,2)}, {v(st,2)} op_sel:[0,1] op_sel_hi:[1,1]')
        for k in range(4): a.e(f'v_exp_f32 v{tm+k}, v{tm+k}')
        for h in range(2): a.e(f'v_pk_mul_f32 {v(G+2*h,2)}, {v(G+2*h,2)}, {v(U+2*h,2)}')
        for h in range(2): a.e(f'v_pk_add_f32 {v(tm+2*h,2)}, {v(tm+2*h,2)}, 1.0 op_sel_hi:[1,0]')
        for k in range(4): a.e(f'v_rcp_f32 v{tm+k}, v{tm+k}')
        for h in range(2): a.e(f'v_pk_mul_f32 {v(G+2*h,2)}, {v(G+2*h,2)}, {v(st+2,2)} op_sel_hi:[1,0]')
        for h in range(2): a.e(f'v_pk_mul_f32 {v(G+2*h,2)}, {v(G+2*h,2)}, {v(tm+2*h,2)}')
        for h in range(2): a.e(f'v_cvt_pk_bf16_f32 v{out+h}, v{G+2*h}, v{G+2*h+1}')
    for p in range(2):
        swiglu(ACC + 96 + 8 * p, ACC + 96 + 8 * p + 4, MX + 4 * p, TM + 4 * p, 252 + 2 * p)
    for h in range(2): a.e(f'v_permlane16_swap_b32 v{252+h}, v{254+h}')
    a.e(f'buffer_store_dwordx4 v[252:255], v17, s[20:23], s34 offen sc1')
    for i in range(4):
        o = 244 + 2 * i
        swiglu(ACC + 32 + 4 * i, ACC + 80 + 4 * i, ST + 4 * i, TM + 4 * (i & 1), o)
        if i & 1:
            for h in range(2): a.e(f'v_permlane32_swap_b32 v{o-2+h}, v{o+h}')
            a.e(f'buffer_store_dwordx4 {v(o-2,4)}, v16, s[20:23], s{32+(i>>1)} offen sc1')
    for i in range(4):
        o = OUT + 4 * i
        for j in range(2): swiglu(ACC + 16 * j + 4 * i, ACC + 16 * (j + 3) + 4 * i, ST + 4 * i, TM + 4 * j, o + 2 * j)
        a.e(f'buffer_store_dwordx4 {v(o,4)}, v3, s[20:23], s{30+(i>>1)} offen offset:{1024*(i&1)} sc1')
    a.e('s_lshl_b32 s24, s3, 12')
    for i in range(4):
        a.e(f's_xor_b32 s25, s3, {i}\ns_lshl_b32 s25, s25, 10\ns_add_u32 s25, s25, s24\nv_add_u32 v{6+i}, s25, v3')
    a.e('v_lshrrev_b32 v11, 4, v2\nv_and_b32 v12, 15, v2')
    a.e('s_movk_i32 s30, 640\nv_mul_u32_u24 v13, s30, v11\nv_lshl_add_u32 v13, v12, 3, v13\nv_add_u32 v13, s57, v13')
    a.e('s_lshl_b32 s30, s52, 6\ns_lshl4_add_u32 s30, s3, s30\nv_add_u32 v14, s30, v12\ns_movk_i32 s30, 1280\nv_mul_u32_u24 v14, s30, v14')
    a.e('v_mul_u32_u24 v11, 40, v11\nv_add_u32 v14, v14, v11\ns_mul_i32 s31, s53, 160')
    a.e('v_lshlrev_b32 v12, 2, v12\nv_mov_b32 v15, 1')
    a.e(f's_lshl_b32 s26, s4, 9\ns_lshl2_add_u32 s26, s5, s26\ns_add_u32 s26, s26, {FL}')
    a.e(f's_lshr_b32 s27, s52, 1\ns_lshl_b32 s27, s27, 9\ns_add_u32 s27, s27, {FL}')
    a.e(f's_mov_b32 s28, {SPINMAX}')
    a.e('s_waitcnt vmcnt(0)\ns_barrier'); ts(a, 3)
    a.e('s_cmp_lg_u32 s3, 0\ns_cbranch_scc1 L2_go')
    a.e('s_mov_b64 exec, 1')
    a.e('buffer_store_dword v15, v12, s[20:23], s26 offen sc1')
    a.e('s_mov_b64 exec, -1')
    a.e('L2_poll:')
    a.e('buffer_load_dword v17, v12, s[20:23], s27 offen sc1')
    a.e('s_sub_u32 s28, s28, 1\ns_cbranch_scc1 L2_go')
    a.e('s_waitcnt vmcnt(0)')
    a.e('v_cmp_ne_u32 vcc, 0, v17')
    a.e('s_nop 1\ns_cmp_eq_u64 vcc, -1\ns_cbranch_scc0 L2_poll')
    a.e('L2_go:')
    a.e('s_waitcnt vmcnt(0)\ns_barrier'); ts(a, 4)
    a.reset()
    AC3 = 24; SLOT = [104, 120, 156, 172, 188, 220, 236]; NS = len(SLOT)
    def loads(i):
        b = SLOT[i % NS]
        r = [f's_mov_b32 s27, {16384*i}']
        for k in range(4): r.append(f'buffer_load_dwordx4 {v(b+4*k,4)}, v{6+k}, s[44:47], s27 offen sc1')
        return r
    for i in range(NS):
        for x in loads(i): a.e(x)
    for i in range(14):
        b = SLOT[i % NS]
        m = []
        for k in range(4):
            for t in range(5):
                r = AC3 + 16 * t + 4 * k
                m.append(f'{MF} {v(r,4)}, {wreg(i,t)}, {v(b+4*k,4)}, {"0" if i==0 else v(r,4)}')
        f = loads(i - 1 + NS) if (i >= 1 and i - 1 + NS < 14) else []
        out = []
        for n, x in enumerate(m):
            out.append(x)
            if f and n >= 2 and n % 4 == 2:
                y = f.pop(0); out.append(y)
                if y.startswith('s_'): out.append(f.pop(0))
        out += f
        for x in out: a.e(x)
    ts(a, 5)
    ACC = AC3
    for k in range(1, 4):
        a.e(f's_xor_b32 s25, s3, {k}\ns_mul_i32 s25, s25, 15360\ns_add_u32 s25, s25, {5120*(k-1)}\nv_add_u32 v{5+k}, s25, v3')
    a.e('s_mul_i32 s25, s3, 15360\nv_add_u32 v5, s25, v3')
    RES = 104
    for t in range(5): a.e(f'ds_read_b64_tr_b16 {v(RES+2*t,2)}, v13 offset:{128*t}')
    for k in range(1, 4):
        for t in range(5): a.e(f'ds_write_b128 v{5+k}, {v(ACC+16*t+4*k,4)} offset:{1024*t}')
    a.e('s_mov_b32 s32, 0xffff0000')
    RF = 116
    for t in range(5):
        for h in range(2):
            a.e(f'v_lshlrev_b32 v{RF+4*t+2*h}, 16, v{RES+2*t+h}\nv_and_b32 v{RF+4*t+2*h+1}, s32, v{RES+2*t+h}')
        for h in range(2): a.e(f'v_pk_add_f32 {v(ACC+16*t+2*h,2)}, {v(ACC+16*t+2*h,2)}, {v(RF+4*t+2*h,2)}')
    a.e('s_waitcnt lgkmcnt(0)\ns_barrier')
    P = 156
    for t in range(5):
        for k in range(3): a.e(f'ds_read_b128 {v(P+12*t+4*k,4)}, v5 offset:{5120*k+1024*t}')
    O = 104
    for t in range(5):
        for h in range(2):
            a.e(f'v_pk_add_f32 {v(ACC+16*t+2*h,2)}, {v(ACC+16*t+2*h,2)}, {v(P+12*t+2*h,2)}')
            a.e(f'v_pk_add_f32 {v(P+12*t+4+2*h,2)}, {v(P+12*t+4+2*h,2)}, {v(P+12*t+8+2*h,2)}')
        for h in range(2):
            a.e(f'v_pk_add_f32 {v(ACC+16*t+2*h,2)}, {v(ACC+16*t+2*h,2)}, {v(P+12*t+4+2*h,2)}')
        for h in range(2): a.e(f'v_cvt_pk_bf16_f32 v{O+2*t+h}, v{ACC+16*t+2*h}, v{ACC+16*t+2*h+1}')
    a.e(f'buffer_store_dwordx4 {v(O,4)}, v14, s[48:51], s31 offen')
    a.e(f'buffer_store_dwordx4 {v(O+4,4)}, v14, s[48:51], s31 offen offset:16')
    a.e(f'buffer_store_dwordx2 {v(O+8,2)}, v14, s[48:51], s31 offen offset:32')
    ts_end(a, 1, 6)
    a.e('L2_end:\ns_endpgm')
    return a.text(), 512

def build(extra_empty=0):
    ks = [('conv_kernel', lambda: K1P.k1p(sys.modules[__name__]), 256, 81920 + 40960 + 1024),
          (NAME + '_kernel', k23, 256, K23_LDS)]
    hdr = ['; generated by dev/gen3.py: 2-kernel pipeline (LN1 + shift conv + long conv + weight packing; LN2 + gate/up GEMM + down GEMM)']
    for n, f, g, l in ks: hdr.append(f'; @launch kernel={n} grid=({g},1,1) block=(256,1,1) lds={l}')
    for i in range(extra_empty): hdr.append(f'; @launch kernel=empty_kernel grid=(256,1,1) block=(256,1,1) lds=0')
    out = '\n'.join(hdr) + '\n.amdgcn_target "amdgcn-amd-amdhsa--gfx950"\n.text\n'
    desc = '.section .rodata,"a"\n'
    if extra_empty: ks = ks + [('empty_kernel', lambda: ('  s_endpgm\n', 64), 256, 0)]
    for n, f, g, l in ks:
        body, nv = f()
        out += f'.globl {n}\n.p2align 8\n.type {n},@function\n{n}:\n{body}'
        desc += f'''.p2align 6
.amdhsa_kernel {n}
  .amdhsa_next_free_vgpr {nv}
  .amdhsa_next_free_sgpr 102
  .amdhsa_accum_offset {min(nv,256)}
  .amdhsa_group_segment_fixed_size 0
  .amdhsa_kernarg_size 104
  .amdhsa_user_sgpr_count 2
  .amdhsa_user_sgpr_kernarg_segment_ptr 1
  .amdhsa_system_sgpr_workgroup_id_x 1
  .amdhsa_float_denorm_mode_32 3
.end_amdhsa_kernel
'''
    return out + 'Lcode_end:\n' + desc

if __name__ == '__main__':
    ee = int(sys.argv[2]) if len(sys.argv) > 2 else 0
    if len(sys.argv) > 3 and sys.argv[3] == '1': TSON = True
    for kv in sys.argv[4:]:
        k_, v_ = kv.split('=')
        globals()[k_] = eval(v_)
    open(sys.argv[1], 'w').write(build(ee))
```

```python
from asmlib import *

def k1p(G):
    MF = G.MF; ts = G.ts; ts_end = G.ts_end; srd_consts = G.srd_consts; srd_fix = G.srd_fix
    HSC = G.HSC1
    PSC = G.PSC1
    a = Asm()
    NT = lambda c: ' nt' if c in G.NTS else ''
    XB = 81920
    a.e('s_cmp_ge_u32 s2, 256\ns_cbranch_scc1 L1_end'); ts(a, 0)
    a.e('s_load_dwordx2 s[4:5], s[0:1], 0')
    a.e('s_load_dwordx2 s[20:21], s[0:1], 96')
    a.e('s_load_dwordx2 s[16:17], s[0:1], 88')
    a.e('s_cmp_lt_u32 s2, 224\ns_cbranch_scc1 L1_npf')
    G.code_pf(a, 'conv_kernel')
    a.e('L1_npf:')
    a.e('v_lshrrev_b32 v1, 6, v0\nv_and_b32 v2, 63, v0')
    a.e('s_and_b32 s60, s2, 7\ns_lshr_b32 s61, s2, 3')
    a.e('v_readfirstlane_b32 s3, v1')
    srd_consts(a, 20, G.WSEND); srd_consts(a, 16, 256)
    a.e('s_movk_i32 s62, 1280')
    a.e('s_lshr_b32 s28, s3, 1\ns_lshl3_add_u32 s28, s28, 8')
    a.e('s_load_dwordx2 s[24:25], s[0:1], s28')
    a.e('s_add_u32 s28, s61, 24\ns_and_b32 s28, s28, 31\ns_lshl_b32 s28, s28, 6\nv_add_u32 v3, s28, v2\nv_mul_u32_u24 v3, s62, v3')
    a.e('s_mul_i32 s28, s60, 160\ns_and_b32 s29, s3, 1\ns_mul_i32 s29, s29, 156\ns_add_u32 s28, s28, s29\nv_add_u32 v3, s28, v3')
    srd_consts(a, 24, G.NB_X)
    def kvpf():
        srd_fix(a, 24)
        for i, m in enumerate(G.PFM): a.e(f'buffer_load_dword v{255-2*i}, v3, s[24:27], 0 offen{m}')
    a.e('s_cmp_ge_u32 s61, 28\ns_cbranch_scc1 L1_wd')
    a.e('s_cmp_ge_u32 s61, 8\ns_cbranch_scc1 L1_c')
    a.e('s_and_b32 s63, s3, 1\ns_lshr_b32 s64, s3, 1')
    a.e('s_lshl3_add_u32 s29, s63, 56')
    a.e('s_load_dwordx2 s[8:9], s[0:1], s29')
    srd_consts(a, 4, G.NB_X); srd_consts(a, 8, G.NB_W)
    a.e('v_and_b32 v4, 7, v2\nv_lshrrev_b32 v5, 3, v2')
    a.e('s_lshl_b32 s30, s2, 5\nv_lshl_add_u32 v6, v5, 2, s30\nv_mul_u32_u24 v6, s62, v6')
    a.e('v_xor_b32 v17, v4, v5\nv_lshl_add_u32 v6, v17, 4, v6')
    a.e('v_and_b32 v7, 28, v2\nv_lshrrev_b32 v18, 5, v2\nv_add3_u32 v7, v7, v18, s30\nv_mul_u32_u24 v7, s62, v7')
    a.e('v_and_b32 v18, 3, v2\nv_lshl_add_u32 v7, v18, 4, v7')
    a.e(f's_mul_i32 s50, s3, 10240\ns_add_u32 s50, s50, {XB}')
    a.e('s_mul_i32 s30, s3, 320\ns_lshl_b32 s31, s63, 6\ns_add_u32 s31, s31, s30')
    a.e('s_xor_b32 s32, s63, 1\ns_lshl_b32 s32, s32, 8\ns_add_u32 s32, s32, s30')
    a.e('s_waitcnt lgkmcnt(0)')
    srd_fix(a, 4)
    X = 24
    xt = []
    for r in range(4):
        for st in range(2):
            a.e(f's_add_u32 m0, s50, {2048*r+1024*st-1280*r-128*st}' if 2048*r+1024*st else 's_mov_b32 m0, s50')
            t_ = a.e(f'buffer_load_dwordx4 v6, s[4:7], s31 offen offset:{1280*r+128*st}{NT("x")} lds')
        if r % 2 == 0:
            a.e(f's_add_u32 m0, s50, {8192+512*r-1280*r}')
            t_ = a.e(f'buffer_load_dwordx4 v7, s[4:7], s32 offen offset:{1280*r}{NT("x")} lds')
        xt.append(t_)
    kvpf()
    a.e('s_lshr_b32 s65, s60, 1\ns_and_b32 s66, s61, 3\ns_lshl2_add_u32 s65, s65, s66')
    a.e('s_and_b32 s66, s60, 1\ns_lshr_b32 s67, s61, 2\ns_lshl1_add_u32 s66, s66, s67')
    a.e('s_and_b32 s67, s65, 1')
    a.e('v_lshrrev_b32 v8, 4, v2\nv_and_b32 v9, 15, v2\nv_lshlrev_b32 v10, 1, v8\nv_xor_b32 v9, v9, v10')
    a.e('s_movk_i32 s33, 3456\nv_mul_u32_u24 v8, s33, v8\nv_lshl_add_u32 v8, v9, 4, v8')
    a.e('v_xor_b32 v10, 8, v9\nv_subrev_u32 v11, v9, v10\nv_lshl_add_u32 v11, v11, 4, v8')
    a.e('s_cmp_eq_u32 s65, 15\ns_cselect_b32 s34, 8, 16')
    a.e('v_mov_b32 v12, 0x7ff00000')
    a.e('v_cmp_le_u32 vcc, s34, v9\nv_cndmask_b32 v8, v8, v12, vcc')
    a.e('v_cmp_le_u32 vcc, s34, v10\nv_cndmask_b32 v9, v11, v12, vcc')
    a.e('s_lshl1_add_u32 s34, s66, s64\ns_mul_i32 s34, s34, 276480')
    a.e('s_lshr_b32 s35, s65, 1\ns_mul_i32 s35, s35, 448\ns_add_u32 s34, s34, s35\ns_mul_i32 s35, s67, 192\ns_add_u32 s34, s34, s35')
    a.e('s_mul_i32 s35, s63, 40960\ns_mul_i32 s36, s64, 20480\ns_add_u32 s36, s36, s35')
    for b in (8, 16, 20): srd_fix(a, b)
    def wdma(lo, hi):
        for gm in range(lo, hi):
            if 'W' in G.DIAG: continue
            a.e(f's_add_u32 m0, s36, {1024*gm}')
            a.e(f'buffer_load_dwordx4 v{8+(gm&1)}, s[8:11], s34 offen{NT("w")} lds')
            if gm < 19: a.e('s_add_u32 s34, s34, 13824')
    wdma(0, G.WN0)
    S = 64
    a.e('v_mov_b32 v12, 0x3f803f80')
    for i in range(8): a.e(f'v_mov_b32 v{S+i}, 0')
    XL = XB + 40960
    a.e(f'v_lshlrev_b32 v13, 5, v4\nv_add_u32 v13, {XL}, v13\ns_lshl_b32 s37, s3, 8\nv_add_u32 v14, s37, v13')
    a.e('v_lshlrev_b32 v15, 4, v4\nv_lshl_add_u32 v16, v5, 9, v15\nv_lshl_add_u32 v15, v5, 10, v15')
    a.e(f's_mul_i32 s37, s2, {G.XSTR}\ns_add_u32 s37, s37, {G.XA}')
    a.e('s_lshl_b32 s38, s31, 6\ns_add_u32 s38, s38, s37\ns_add_u32 s39, s38, 8192\ns_lshl_b32 s40, s32, 6\ns_add_u32 s40, s40, s37')
    a.e('s_mov_b32 s41, 0x05040100\ns_mov_b32 s42, 0x07060302\ns_mov_b32 s43, 0xffff0000')
    a.e('v_lshlrev_b32 v17, 4, v17\nv_lshl_add_u32 v17, v4, 7, v17\nv_add_u32 v17, s50, v17')
    a.e('v_lshlrev_b32 v18, 3, v5\nv_lshl_add_u32 v18, v4, 6, v18\nv_add_u32 v18, s50, v18')
    for r in range(4):
        a.waitvm(xt[r])
        for st in range(2): a.e(f'ds_read_b128 {v(X+10*r+4*st,4)}, v17 offset:{2048*r+1024*st}')
        a.e(f'ds_read_b64 {v(X+10*r+8,2)}, v18 offset:{8192+512*r}')
    for r in range(4):
        for d in range(10):
            a.e(f'v_dot2c_f32_bf16 v{S+2*r}, v12, v{X+10*r+d}\nv_dot2c_f32_bf16 v{S+2*r+1}, v{X+10*r+d}, v{X+10*r+d}')
    ts(a, 1)
    for e in range(8): a.e(f'v_add_f32_dpp v{S+e}, v{S+e}, v{S+e} row_ror:8 row_mask:0xf bank_mask:0xf')
    for sw in ('v_permlane16_swap_b32', 'v_permlane32_swap_b32'):
        for e in range(8): a.e(f'v_mov_b32 v{S+8+e}, v{S+e}')
        for e in range(8): a.e(f'{sw} v{S+e}, v{S+8+e}')
        for e in range(8): a.e(f'v_add_f32 v{S+e}, v{S+e}, v{S+8+e}')
    a.e('s_mov_b64 exec, 0xff')
    a.e(f'ds_write_b128 v14, {v(S,4)}\nds_write_b128 v14, {v(S+4,4)} offset:16')
    a.e('s_mov_b64 exec, -1')
    a.e('s_waitcnt lgkmcnt(0)\ns_barrier')
    for w in range(4):
        for h in range(2): a.e(f'ds_read_b128 {v(S+8*w+4*h,4)}, v13 offset:{256*w+16*h}')
    U = 100
    for r in range(4):
        for d in range(10):
            a.e(f'v_lshlrev_b32 v{U+20*r+2*d}, 16, v{X+10*r+d}\nv_and_b32 v{U+20*r+2*d+1}, s43, v{X+10*r+d}')
    for h in range(4):
        a.e(f'v_pk_add_f32 {v(S+2*h,2)}, {v(S+2*h,2)}, {v(S+8+2*h,2)}')
        a.e(f'v_pk_add_f32 {v(S+16+2*h,2)}, {v(S+16+2*h,2)}, {v(S+24+2*h,2)}')
    for h in range(4): a.e(f'v_pk_add_f32 {v(S+2*h,2)}, {v(S+2*h,2)}, {v(S+16+2*h,2)}')
    for r in range(4):
        t = S + 2 * r
        a.e(f'v_mul_f32 v{t}, 0xbacccccd, v{t}\nv_mul_f32 v{t+1}, 0x3acccccd, v{t+1}')
    for r in range(4):
        t = S + 2 * r
        a.e(f'v_fma_f32 v{t+1}, -v{t}, v{t}, v{t+1}\nv_max_f32 v{t+1}, 0, v{t+1}\nv_add_f32 v{t+1}, 0x3727c5ac, v{t+1}')
    for r in range(4): a.e(f'v_rsq_f32 v{S+2*r+1}, v{S+2*r+1}')
    for r in range(4): a.e(f'v_mul_f32 v{S+2*r}, v{S+2*r}, v{S+2*r+1}')
    O = 180
    for d in range(10):
        for r in range(4):
            u = U + 20 * r + 2 * d
            a.e(f'v_pk_fma_f32 {v(u,2)}, {v(u,2)}, {v(S+2*r,2)}, {v(S+2*r,2)} op_sel:[0,1,0] op_sel_hi:[1,1,0]')
        for h in range(2):
            o = O + 8 * (d % 8) + 4 * h
            a.e(f'v_perm_b32 v{o}, v{X+10+d}, v{X+d}, s{41+h}\nv_perm_b32 v{o+1}, v{X+30+d}, v{X+20+d}, s{41+h}')
            a.e(f'v_cvt_pk_bf16_f32 v{o+2}, v{U+2*d+h}, v{U+20+2*d+h}\nv_cvt_pk_bf16_f32 v{o+3}, v{U+40+2*d+h}, v{U+60+2*d+h}')
            st = d >> 2; e = 2 * (d & 3) + h
            a.e(f'buffer_store_dwordx4 {v(o,4)}, v{16 if st==2 else 15}, s[20:23], s{38+st} offen offset:{128*e} sc1')
    a.e('v_and_b32 v4, 3, v2\nv_lshrrev_b32 v5, 2, v2')
    a.e('v_and_b32 v6, 7, v5\nv_lshlrev_b32 v6, 5, v6')
    a.e('v_lshlrev_b32 v5, 8, v5')
    a.e('s_add_u32 s37, s67, s64\ns_lshl_b32 s37, s37, 6')
    a.e('v_lshl_add_u32 v7, v4, 3, s37\nv_xor_b32 v20, v7, v6\nv_add3_u32 v20, v20, v5, s35')
    a.e('v_xor_b32 v21, 32, v20')
    a.e('s_lshl_b32 s37, s67, 6\ns_lshl4_add_u32 s37, s64, s37\ns_add_u32 s37, s37, 128')
    a.e('v_lshrrev_b32 v10, 1, v4\nv_and_b32 v11, 1, v4')
    a.e('v_lshl_add_u32 v7, v10, 5, s37\nv_lshl_add_u32 v7, v11, 3, v7\nv_xor_b32 v22, v7, v6\nv_add3_u32 v22, v22, v5, s35')
    a.e('s_cmp_eq_u32 s67, 1\ns_cselect_b32 s37, 16, 192\ns_lshl3_add_u32 s37, s64, s37')
    a.e('v_lshl_add_u32 v7, v11, 5, s37\nv_xor_b32 v23, v7, v6\nv_add_u32 v23, v23, v5\nv_mul_u32_u24 v10, 40960, v10\nv_add_u32 v23, v23, v10')
    a.e('v_lshlrev_b32 v3, 4, v2\nv_lshrrev_b32 v4, 4, v2\nv_lshlrev_b32 v4, 4, v4')
    a.e('v_mov_b32 v5, 1\nv_mov_b32 v6, 0\ns_lshl_b32 s44, s2, 2')
    for i in range(4): a.e(f'v_mov_b32 v{12+i}, 0x3f803f80')
    a.e(f's_mul_i32 s37, s65, 286720\ns_mul_i32 s45, s66, 71680\ns_add_u32 s37, s37, s45\ns_add_u32 s37, s37, {G.W1P}')
    a.e('s_mul_i32 s45, s64, 7\ns_mul_i32 s46, s63, 3\ns_add_u32 s45, s45, s46')
    a.e('s_lshl_b32 s46, s45, 10\ns_add_u32 s37, s37, s46')
    a.e(f's_mul_i32 s46, s66, 14336\ns_mul_i32 s47, s65, 896\ns_add_u32 s46, s46, s47\ns_lshl_b32 s47, s45, 6\ns_add_u32 s46, s46, s47\ns_add_u32 s46, s46, {G.CS}')
    a.e('s_waitcnt vmcnt(0)\ns_barrier'); ts(a, 2)
    a.e('s_cmp_lg_u32 s3, 0\ns_cbranch_scc1 L1_x2')
    a.e('s_mov_b64 exec, 1')
    a.e('buffer_store_dword v5, v6, s[16:19], s44 offen sc1')
    a.e('s_mov_b64 exec, -1')
    a.e('L1_x2:')
    if G.WN0 < 20:
        wdma(G.WN0, 20)
        a.e('s_waitcnt vmcnt(0)\ns_barrier')
    F = 24; CA = 120
    for ks in range(5):
        for t in range(3):
            for hh in range(2):
                a.e(f'ds_read_b64_tr_b16 {v(F+12*ks+4*t+2*hh,2)}, v{20+t} offset:{8192*ks+4096*hh}')
    for ks in range(5):
        for hh in range(2): a.e(f'ds_read_b64_tr_b16 {v(F+60+4*ks+2*hh,2)}, v23 offset:{8192*ks+4096*hh}')
    a.e('s_mov_b32 s47, s37')
    for ks in range(5):
        for t in range(3):
            f = v(F + 12 * ks + 4 * t, 4)
            a.e(f'buffer_store_dwordx4 {f}, v3, s[20:23], s47 offen offset:{1024*t}{PSC}')
            a.e(f'{MF} {v(CA+4*t,4)}, {f}, v[12:15], {v(CA+4*t,4) if ks else 0}')
        if ks < 4: a.e('s_add_u32 s47, s47, 14336')
    a.e('s_mov_b32 s48, 0x00010001\ns_mov_b32 s49, s48')
    a.e('s_mov_b64 exec, s[48:49]')
    for t in range(3): a.e(f'buffer_store_dwordx4 {v(CA+4*t,4)}, v4, s[20:23], s46 offen offset:{64*t}')
    a.e('s_mov_b64 exec, -1')
    a.e('s_waitcnt lgkmcnt(0)')
    a.e('s_cmp_lg_u32 s63, 0\ns_cbranch_scc1 L1_x3')
    a.e('s_add_u32 s47, s37, 6144')
    for ks in range(5):
        f = v(F + 60 + 4 * ks, 4)
        a.e(f'buffer_store_dwordx4 {f}, v3, s[20:23], s47 offen{PSC}')
        a.e(f'{MF} {v(CA+12,4)}, {f}, v[12:15], {v(CA+12,4) if ks else 0}')
        if ks < 4: a.e('s_add_u32 s47, s47, 14336')
    a.e('s_mov_b64 exec, s[48:49]')
    a.e(f'buffer_store_dwordx4 {v(CA+12,4)}, v4, s[20:23], s46 offen offset:384')
    a.e('L1_x3:')
    ts_end(a, 0, 3)
    a.e('s_endpgm')
    a.reset()
    a.e('L1_c:')
    a.e('s_load_dwordx4 s[8:11], s[0:1], 8')
    a.e('s_load_dwordx4 s[12:15], s[0:1], 24')
    a.e('s_load_dwordx2 s[30:31], s[0:1], 40')
    a.e('s_mul_i32 s63, s60, 20\ns_add_u32 s63, s63, s61\ns_sub_u32 s63, s63, 8')
    a.e('s_lshl2_add_u32 s64, s63, s3')
    a.e('s_mul_i32 s65, s3, 12928')
    a.e('s_lshl_b32 s66, s64, 12\ns_lshl_b32 s67, s63, 5')
    a.e('s_lshl_b32 s68, s64, 1\ns_and_b32 s68, s68, -4')
    a.e('v_lshlrev_b32 v4, 4, v2')
    a.e('v_subrev_u32 v5, 4, v4\nv_add_u32 v6, 1020, v4')
    a.e('v_mul_u32_u24 v7, 2560, v0\ns_lshl_b32 s69, s63, 3\nv_add_u32 v7, s69, v7')
    a.e('v_min_u32 v8, 11, v2\nv_mul_u32_u24 v9, 43, v8\nv_lshrrev_b32 v9, 7, v9')
    a.e('v_mul_u32_u24 v10, 509, v9\nv_add_u32 v8, v8, v10')
    a.e('s_lshl_b32 s70, s3, 7\nv_add_u32 v8, s70, v8\nv_mul_u32_u24 v8, s62, v8')
    a.e('s_sub_u32 s69, s69, 3840\nv_add_u32 v8, s69, v8')
    a.e('s_waitcnt lgkmcnt(0)')
    kvpf()
    a.e('s_load_dwordx8 s[36:43], s[12:13], s67')
    a.e('s_load_dword s29, s[30:31], s68')
    a.e('s_mov_b64 s[4:5], s[8:9]\ns_mov_b64 s[8:9], s[10:11]')
    a.e('s_add_u32 s12, s14, s66\ns_addc_u32 s13, s15, 0')
    srd_consts(a, 4, G.NB_X); srd_consts(a, 8, G.NB_X); srd_consts(a, 12, 4096)
    for b in (4, 8, 12, 16, 20): srd_fix(a, b)
    ACC = 24; BF = 56; KR = 120; HL = 152; WK = 154; XA = 200; ET = 232
    FT = 56; PV = 72; OT = 76; DG = 20
    for c in range(4): a.e(f'buffer_load_dwordx4 {v(FT+4*c,4)}, v4, s[12:15], 0 offen offset:{1024*c}{NT("f")}')
    a.e(f'buffer_load_dword v{PV}, v5, s[12:15], 0 offen{NT("f")}')
    for c in range(1, 4): a.e(f'buffer_load_dword v{PV+c}, v6, s[12:15], 0 offen offset:{1024*(c-1)}{NT("f")}')
    a.e('s_add_u32 m0, s65, 32')
    for c in range(4): dma_last = a.e(f'buffer_load_dwordx4 v4, s[12:15], 0 offen offset:{1024*c}{NT("f")} lds')
    a.e(f'buffer_load_dwordx2 {v(HL,2)}, v8, s[4:7], 0 offen{NT("g")}')
    for c in range(1, 4): a.e(f's_mov_b32 s{70+c}, {655360*c}')
    def gath(c):
        so = f's{70+c}' if c else '0'
        return [f'buffer_load_dwordx2 {v(KR+8*c,2)}, v7, s[4:7], {so} offen{NT("g")}',
                f'buffer_load_dwordx2 {v(KR+8*c+2,2)}, v7, s[4:7], {so} offen offset:1280{NT("g")}',
                f'buffer_load_dwordx2 {v(KR+8*c+4,2)}, v7, s[8:11], {so} offen{NT("g")}',
                f'buffer_load_dwordx2 {v(KR+8*c+6,2)}, v7, s[8:11], {so} offen offset:1280{NT("g")}']
    gl = [gath(c) for c in range(4)]
    if G.GBAR: a.e('s_barrier')
    for x in gl[0]: a.e(x)
    a.e('v_and_b32 v5, 15, v2\nv_lshrrev_b32 v6, 4, v2')
    a.e('v_add_u32 v10, 12416, v4')
    a.e('v_and_b32 v11, 1, v2\nv_lshlrev_b32 v11, 4, v11')
    a.e('v_add_u32 v12, 4160, v11')
    a.e('v_cmp_gt_u32 vcc, 32, v2\nv_cndmask_b32 v11, v12, v11, vcc')
    a.e('v_cmp_gt_u32 vcc, 30, v2\nv_cndmask_b32 v10, v11, v10, vcc')
    a.e('v_add_u32 v10, s65, v10')
    for i in range(4): a.e(f'v_mov_b32 v{OT+i}, 0')
    a.e(f'ds_write_b128 v10, {v(OT,4)}')
    a.e('v_and_b32 v11, 1, v5')
    a.e('v_cmp_eq_u32 vcc, 1, v11')
    a.e('v_mov_b32 v12, 4164\nv_mov_b32 v13, 2\nv_cndmask_b32 v12, v12, v13, vcc')
    a.e('v_lshl_add_u32 v12, v5, 1, v12\nv_lshl_add_u32 v12, v6, 4, v12\nv_add_u32 v12, s65, v12')
    a.e('v_add_u32 v13, 1024, v12\nv_add_u32 v14, 2048, v12\nv_add_u32 v15, 3072, v12')
    a.e('v_lshlrev_b32 v11, 5, v5\nv_sub_u32 v11, 8800, v11\nv_lshl_add_u32 v11, v6, 4, v11\nv_add_u32 v11, s65, v11')
    a.e('v_add_u32 v10, s65, v4')
    a.e('v_lshlrev_b32 v9, 2, v0\nv_sub_u32 v9, 9340, v9')
    a.e(f'v_lshrrev_b32 v16, 1, v5\ns_mov_b32 s32, {G.XSTR}\nv_mul_lo_u32 v16, v16, s32')
    a.e('v_and_b32 v17, 1, v5\nv_lshl_add_u32 v17, v17, 2, v6\nv_lshl_add_u32 v16, v17, 4, v16')
    a.e(f's_lshl_b32 s33, s64, 7\ns_add_u32 s33, s33, {G.XA}')
    a.e('v_lshlrev_b32 v18, 2, v2')
    a.e('v_and_b32 v17, 1, v6\nv_lshlrev_b32 v17, 1, v17\nv_lshrrev_b32 v19, 3, v5\nv_add_u32 v17, v17, v19')
    a.e('s_mov_b32 s34, 163840\nv_mul_lo_u32 v17, v17, s34')
    a.e('s_and_b32 s34, s64, 7\nv_and_b32 v19, 7, v5\nv_xor_b32 v19, s34, v19\nv_lshl_add_u32 v17, v19, 5, v17')
    a.e('v_lshrrev_b32 v19, 1, v6\nv_lshl_add_u32 v17, v19, 4, v17')
    a.e(f's_lshl_b32 s34, s64, 8\ns_add_u32 s34, s34, {G.HT}\ns_mov_b32 s35, 0xffff0000')
    for x in gl[1][:G.G1PRE]: a.e(x)
    for ch in range(4):
        for h in range(2):
            a.e(f's_lshl_b32 s{44+4*ch+2*h}, s{36+2*ch+h}, 16\ns_and_b32 s{45+4*ch+2*h}, s{36+2*ch+h}, s35')
    a.e('v_lshlrev_b32 v3, 3, v6\nv_add_u32 v3, v3, v5\nv_sub_u32 v3, 15, v3')
    a.e('s_and_b32 s28, s64, 1\ns_lshl_b32 s28, s28, 4\ns_lshr_b32 s29, s29, s28\ns_and_b32 s29, s29, 0xffff')
    a.e('v_and_b32 v19, 1, v3\nv_lshlrev_b32 v19, 4, v19\nv_lshlrev_b32 v19, v19, s29')
    a.e('v_lshrrev_b32 v3, 1, v3')
    for i in range(4):
        a.e(f'v_cmp_eq_u32 vcc, {i}, v3\nv_cndmask_b32 v{DG+i}, 0, v19, vcc')
    for c in range(4):
        o = OT + 4 + 4 * c
        a.e(f'v_alignbit_b32 v{o}, v{FT+4*c}, v{PV+c}, 16')
        for i in range(1, 4): a.e(f'v_alignbit_b32 v{o+i}, v{FT+4*c+i}, v{FT+4*c+i-1}, 16')
        a.e(f'ds_write_b128 v10, {v(o,4)} offset:{4160+32+1024*c}')
    a.waitvm(dma_last); ts(a, 1)
    AR = lambda p, q: 32 * q + 4 * p
    rest1 = gl[1][G.G1PRE:]
    def areads(q):
        r_ = []
        for p in range(8):
            o = 128 * (p & 1) + 16 * q; r = AR(p, q)
            r_.append(f'ds_read2_b32 a[{r}:{r+1}], v{12+(p>>1)} offset0:{o} offset1:{o+1}')
            r_.append(f'ds_read2_b32 a[{r+2}:{r+3}], v{12+(p>>1)} offset0:{o+2} offset1:{o+3}')
        return r_
    for q in range(G.NPRE):
        for x in areads(q): a.e(x)
        if rest1: a.e(rest1.pop(0))
    for x in rest1: a.e(x)
    def valu(c):
        K0 = KR + 8 * c; K1 = K0 + 2; V0 = K0 + 4; V1 = K0 + 6
        P0 = WK; P1 = WK + 2; Q1 = WK + 4; U = WK + 6; UV = U + 20; AC = UV + 8; O = AC + 8
        r = []
        for dst, rr in ((Q1, 0), (P0, 1), (P1, 2)):
            for h in range(2):
                sh = 3 * c + rr
                if sh: r.append(f'v_mov_b32_dpp v{dst+h}, v{HL+h} row_shl:{sh} row_mask:0xf bank_mask:0xf')
                else: r.append(f'v_mov_b32 v{dst+h}, v{HL+h}')
        for h in range(2):
            r.append(f'v_mov_b32_dpp v{P1+h}, v{K1+h} wave_shr:1 row_mask:0xf bank_mask:0xf')
            r.append(f'v_mov_b32_dpp v{P0+h}, v{K0+h} wave_shr:1 row_mask:0xf bank_mask:0xf')
        def unp(dst, src):
            for h in range(2):
                r.append(f'v_lshlrev_b32 v{dst+2*h}, 16, v{src+h}')
                r.append(f'v_and_b32 v{dst+2*h+1}, s35, v{src+h}')
        unp(U + 16, K1); unp(U + 12, K0)
        for h in range(2):
            r.append(f'v_mov_b32_dpp v{Q1+h}, v{P1+h} wave_shr:1 row_mask:0xf bank_mask:0xf')
        unp(U + 8, P1); unp(U + 4, P0); unp(U, Q1)
        for j in range(4):
            for o in (1, 0):
                for ch in range(4):
                    src = U + 4 * (3 + o - j) + ch
                    if j == 0: r.append(f'v_mul_f32 v{AC+4*o+ch}, s{44+4*ch}, v{src}')
                    else: r.append(f'v_fmac_f32 v{AC+4*o+ch}, s{44+4*ch+j}, v{src}')
        unp(UV, V0); unp(UV + 4, V1)
        for i in range(8): r.append(f'v_mul_f32 v{AC+i}, v{AC+i}, v{UV+i}')
        for ch in range(4): r.append(f'v_cvt_pk_bf16_f32 v{O+ch}, v{AC+4+ch}, v{AC+ch}')
        for ch in range(4): r.append(f'ds_write_b32 v9, v{O+ch} offset:{12928*ch+1024*(3-c)}')
        return r
    def breads(c):
        r = []
        for q in range(8):
            for tt in range(2):
                t = 2 * c + tt
                r.append(f'ds_read_b128 {v(BF+8*q+4*tt,4)}, v11 offset:{512*(7-t)+64*q}')
        return r
    started = set()
    def mf(acc, A, B):
        c = v(ACC + 4 * acc, 4) if acc in started else '0'
        started.add(acc)
        return f'{MF} {v(ACC+4*acc,4)}, {A}, {B}, {c}'
    def mfmas(c):
        m = []
        for q in range(8):
            for tt in range(2):
                t = 2 * c + tt; B = v(BF + 8 * q + 4 * tt, 4)
                if q == 0: m.append(mf(t, v(DG, 4), B))
                for p in range(8 - t):
                    m.append(mf(t + p, f'a[{AR(p,q)}:{AR(p,q)+3}]', B))
        return m
    def epi(pr):
        r = []
        for b in range(2):
            jt = 2 * pr + b; t = ET + 8 * b; x = XA + 4 * jt
            for h in range(4):
                r.append(f'v_lshlrev_b32 v{t+2*h}, 16, v{x+h}')
                r.append(f'v_and_b32 v{t+2*h+1}, s35, v{x+h}')
            for k in range(4): r.append(f'v_fmac_f32 v{t+k}, v{t+4+k}, v{ACC+4*jt+k}')
        o = ET + 16 + 4 * (pr & 1)
        for b in range(2):
            t = ET + 8 * b
            r.append(f'v_cvt_pk_bf16_f32 v{o+2*b}, v{t}, v{t+1}')
            r.append(f'v_cvt_pk_bf16_f32 v{o+2*b+1}, v{t+2}, v{t+3}')
        r.append(f'v_permlane16_swap_b32 v{o}, v{o+2}')
        r.append(f'v_permlane16_swap_b32 v{o+1}, v{o+3}')
        r.append(f'buffer_store_dwordx4 {v(o,4)}, v17, s[20:23], s34 offen{HSC}')
        if pr < 3: r.append('s_add_u32 s34, s34, 655360')
        return r
    def spread(m, items):
        out = []; items = sorted(items, key=lambda z: z[0]); k = 0
        for n, x in enumerate(m):
            out.append(x)
            while k < len(items) and items[k][0] <= n: out += items[k][1]; k += 1
        while k < len(items): out += items[k][1]; k += 1
        return out
    def emit(lst):
        for x in lst:
            if callable(x): x()
            else: a.e(x)
    emit(valu(0))
    a.e('s_waitcnt lgkmcnt(0)\ns_barrier'); ts(a, 2)
    polltok = []
    def poll_issue(): polltok.append(a.e('buffer_load_dword v19, v18, s[16:19], 0 offen sc1'))
    def poll_check():
        a.e('s_cmp_lg_u32 s3, 0\ns_cbranch_scc1 L1_back')
        a.e('v_cmp_ne_u32 vcc, 0, v19')
        a.e('s_nop 1\ns_cmp_eq_u64 vcc, -1\ns_cbranch_scc0 L1_slow')
        a.e('L1_back:')
    xal = []; mbase = 0
    for jt in range(8):
        xal.append([f'buffer_load_dwordx4 {v(XA+4*jt,4)}, v16, s[20:23], s33 offen sc1'] + ([f's_add_u32 s33, s33, {8*G.XSTR}'] if jt < 7 else []))
    for c in range(4):
        br = breads(c); m = mfmas(c); items = []
        if c == G.POLLC + 1: emit(sum(xal, []))
        emit(br[:4])
        if c == 0:
            for q in range(8):
                lst = br[2*q+4:2*q+6] + (areads(q + G.NPRE) if q + G.NPRE < 8 else [])
                for i, x in enumerate(lst): items.append((15 * q + i * 15 // max(len(lst), 15), [x]))
        else:
            for i, x in enumerate(br[4:]): items.append((i, [x]))
        for i, x in enumerate(gl[2] + gl[3]):
            pos = G.LD0 + G.LDS_ * i - mbase
            if 0 <= pos < len(m): items.append((pos, [x]))
        mbase += len(m)
        if c == G.POLLC: items.append((max(0, len(m) - G.POLLD), [poll_issue]))
        if c < 3:
            va = valu(c + 1)
            st = len(m) - (len(va) + 1) // 2 - 1
            st = max(st, 12)
            for i in range(0, len(va), 2): items.append((st + i // 2, va[i:i + 2]))
        if c == 3:
            ep = epi(0) + epi(1) + epi(2)
            e0 = 12 if G.POLLC < 2 else 26
            for i in range(0, len(ep), 2): items.append((e0 + i // 2, ep[i:i + 2]))
        emit(spread(m, items))
        if c == G.POLLC: poll_check()
        if c < 3: a.e('s_waitcnt lgkmcnt(0)\ns_barrier')
        if c < 3: ts(a, 3 + c)
    emit(epi(3))
    ts_end(a, 0, 6)
    a.e('s_endpgm')
    a.reset()
    a.e(f'L1_slow:\ns_mov_b32 s28, {G.SPINMAX}')
    a.e('L1_spin:')
    if G.SLP: a.e(f's_sleep {G.SLP}')
    a.e('buffer_load_dword v19, v18, s[16:19], 0 offen sc1')
    a.e('s_sub_u32 s28, s28, 1')
    a.e('s_waitcnt vmcnt(0)')
    a.e('s_cbranch_scc1 L1_back')
    a.e('v_cmp_ne_u32 vcc, 0, v19')
    a.e('s_nop 1\ns_cmp_eq_u64 vcc, -1\ns_cbranch_scc0 L1_spin')
    a.e('s_branch L1_back')
    a.reset()
    a.e('L1_wd:')
    a.e('s_load_dwordx2 s[8:9], s[0:1], 72')
    srd_consts(a, 8, G.NB_W)
    a.e('s_sub_u32 s63, s2, 224')
    for i in range(5):
        a.e(f'v_add_u32 v10, {64*i}, v2\nv_mul_u32_u24 v11, 6554, v10\nv_lshrrev_b32 v11, 16, v11')
        a.e(f'v_mul_u32_u24 v11, 1120, v11\nv_lshl_add_u32 v{4+i}, v10, 4, v11')
    a.e('s_lshr_b32 s64, s3, 1\ns_lshl1_add_u32 s64, s63, s64')
    a.e('s_and_b32 s65, s3, 1')
    a.e('s_mul_i32 s30, s64, 40960\ns_mul_i32 s31, s65, 640\ns_add_u32 s30, s30, s31')
    a.e('s_mul_i32 s31, s3, 20480')
    a.e('v_lshlrev_b32 v12, 4, v2')
    a.e('s_waitcnt lgkmcnt(0)')
    for b in (8, 20): srd_fix(a, b)
    kvpf()
    a.e('s_cmp_ge_u32 s63, 27\ns_cbranch_scc1 L1_z')
    tk = []
    for un in range(4):
        for i in range(5):
            a.e(f's_add_u32 m0, s31, {5120*un+1024*i}')
            t_ = a.e(f'buffer_load_dwordx4 v{4+i}, s[8:11], s30 offen{NT("w")} lds' if 'D' not in G.DIAG else 's_nop 0')
        tk.append(t_)
        if un < 3: a.e('s_add_u32 s30, s30, 160')
    a.e('v_lshrrev_b32 v10, 2, v2\nv_mul_u32_u24 v10, 160, v10\nv_and_b32 v11, 3, v2\nv_mul_u32_u24 v11, 40, v11\nv_add3_u32 v10, v10, v11, s31')
    a.e('v_add_u32 v13, 4096, v12')
    a.e(f's_mul_i32 s32, s65, {4*276480}\ns_mul_i32 s33, s64, 5120\ns_add_u32 s32, s32, s33\ns_add_u32 s32, s32, {G.WDP}')
    F = 24
    for un in range(4):
        a.waitvm(tk[un])
        if un == 0: ts(a, 1)
        for t in range(5):
            for hh in range(2):
                a.e(f'ds_read_b64_tr_b16 {v(F+20*un+4*t+2*hh,2)}, v10 offset:{5120*un+2560*hh+8*t}')
        for t in range(5):
            if t < 4: a.e(f'buffer_store_dwordx4 {v(F+20*un+4*t,4)}, v12, s[20:23], s32 offen offset:{1024*t}{PSC}')
            else: a.e(f'buffer_store_dwordx4 {v(F+20*un+4*t,4)}, v13, s[20:23], s32 offen{PSC}')
        if un < 3: a.e('s_add_u32 s32, s32, 276480')
    ts(a, 2)
    ts_end(a, 0, 3)
    a.e('s_endpgm')
    a.reset()
    a.e('L1_z:')
    a.e(f's_sub_u32 s63, s63, 27\ns_lshl2_add_u32 s63, s63, s3\ns_lshl_b32 s63, s63, 12\ns_add_u32 s63, s63, {G.PST}')
    for i in range(4): a.e(f'v_mov_b32 v{24+i}, 0')
    for i in range(4): a.e(f'buffer_store_dwordx4 v[24:27], v12, s[20:23], s63 offen offset:{1024*i}')
    ts(a, 1); ts(a, 2)
    ts_end(a, 0, 3)
    a.e('L1_end:\ns_endpgm')
    return a.text(), 512
```

```python
import sys
from asmlib import *
import k1p as K1P

NAME = 'sequential_preLN__ssm_conv_h3__swiglu_ffn__prompt'
def al(x, a): return (x + a - 1) // a * a
XSTR = 82048
XA = 0
HT = al(XA + 64 * XSTR, 4096)
W1P = HT + 2621440
WDP = W1P + 16 * 20 * 14 * 1024
CS = WDP + 8 * 54 * 5 * 1024
ACT = al(CS + 4 * 14336, 4096)
PST = ACT + 32 * 56 * 4 * 1024
FL = PST + 65536
WSEND = FL + 16384
HSC1 = ''
PSC1 = ''
OSC = ''
NTS = 'xwpf'
G1PRE = 2
LD0 = 10
LDS_ = 24
NPRE = 2
POLLC = 2
POLLD = 40
CPF = 1
GBAR = 1
PFM = ['']
WSOFF = 0
WN0 = 0
SLP = 8
CPF2 = 1
NB_X = 2621440
NB_W = 2211840
LOG2E = 0x3fb8aa3b
MF = 'v_mfma_f32_16x16x32_bf16'

TSON = False
PF2 = False
DIAG = ''
DSP = 5
DOFF = 3
TSB = WSEND
def ts(a, i):
    if TSON:
        a.e(f's_memrealtime s[{80+2*i}:{81+2*i}]')
        if i in (1, 2): a.e(f's_memtime s[{72+2*i}:{73+2*i}]')
def ts_end(a, kid, n):
    if not TSON: return
    ts(a, n)
    a.e('s_waitcnt vmcnt(0) lgkmcnt(0)')
    ts(a, n + 1)
    a.e('s_getreg_b32 s98, hwreg(HW_REG_XCC_ID)\ns_getreg_b32 s99, hwreg(HW_REG_HW_ID)')
    a.e('s_mov_b64 exec, 1')
    a.e('v_readfirstlane_b32 s79, v0')
    a.e('s_lshr_b32 s79, s79, 6\ns_lshl2_add_u32 s79, s2, s79\ns_lshl_b32 s79, s79, 6')
    a.e(f's_add_u32 s79, s79, {TSB + kid * 131072}')
    a.e('s_waitcnt lgkmcnt(0)')
    for i in range(8): a.e(f'v_mov_b32 v{4+i}, s{80+2*i}' if i < n + 2 else f'v_mov_b32 v{4+i}, 0')
    a.e('v_mov_b32 v12, s98\nv_mov_b32 v13, s99\nv_mov_b32 v14, 0\ns_sub_u32 s76, s76, s74\nv_mov_b32 v15, s76\nv_mov_b32 v1, 0')
    a.e('s_mov_b32 s22, 0x10000000')
    for i in range(3): a.e(f'buffer_store_dwordx4 v[{4+4*i}:{7+4*i}], v1, s[20:23], s79 offen offset:{16*i}')

def code_pf(a, label):
    if not CPF: return
    a.e('s_getpc_b64 s[56:57]')
    a.e(f'Lpc_{label}:')
    a.e(f's_mov_b32 s58, Lcode_end-Lpc_{label}\ns_mov_b32 s59, 0x20000\ns_and_b32 s57, s57, 0xffff')
    a.e('v_lshlrev_b32 v254, 7, v0')
    a.e('buffer_load_dword v254, v254, s[56:59], 0 offen')

def srd_consts(a, base, size):
    a.e(f's_mov_b32 s{base+2}, {size}')
    a.e(f's_mov_b32 s{base+3}, 0x20000')
def srd_fix(a, base):
    if base == 20 and WSOFF: a.e(f's_add_u32 s20, s20, {WSOFF}\ns_addc_u32 s21, s21, 0')
    a.e(f's_and_b32 s{base+1}, s{base+1}, 0xffff')

RESL = 135168 + 2048
K23_LDS = RESL + 12288
WPRO = 0
WLOOP = 33
WK0 = 14
SPINMAX = 200000
def k23():
    a = Asm()
    a.e('s_cmp_ge_u32 s2, 256\ns_cbranch_scc1 L2_end'); ts(a, 0)
    a.e('s_load_dwordx2 s[20:21], s[0:1], 96')
    a.e('s_load_dwordx2 s[48:49], s[0:1], 80')
    if CPF2: code_pf(a, 'k23')
    srd_consts(a, 20, WSEND)
    a.e('v_lshrrev_b32 v1, 6, v0\nv_and_b32 v2, 63, v0')
    a.e('v_readfirstlane_b32 s3, v1')
    a.e('s_and_b32 s4, s2, 1\ns_lshl_b32 s4, s4, 3\ns_bfe_u32 s5, s2, 0x30003\ns_add_u32 s4, s4, s5')
    a.e('s_bfe_u32 s5, s2, 0x20001\ns_lshl_b32 s5, s5, 2\ns_lshr_b32 s6, s2, 6\ns_add_u32 s5, s5, s6')
    a.e('s_lshr_b32 s6, s3, 1\ns_and_b32 s7, s3, 1')
    a.e('v_lshlrev_b32 v3, 4, v2\nv_add_u32 v4, 4096, v3')
    a.e('s_mul_i32 s8, s3, 7168')
    a.e(f's_mul_i32 s9, s5, 286720\ns_add_u32 s9, s9, s8\ns_add_u32 s9, s9, {W1P}')
    a.e('s_add_u32 s8, s8, 49152')
    a.e('s_lshl_b32 s10, s3, 12')
    a.e(f's_mul_i32 s11, s4, 163840\ns_add_u32 s11, s11, s10\ns_add_u32 s11, s11, {HT}')
    a.e(f's_mul_i32 s12, s5, 896\ns_add_u32 s12, s12, {CS}')
    a.e('v_min_u32 v5, 223, v0\nv_lshlrev_b32 v5, 2, v5')
    a.e('s_waitcnt lgkmcnt(0)')
    srd_fix(a, 20)
    toks = {}
    def dma(st):
        buf = st % 3
        r = []
        r.append(f's_add_u32 m0, s10, {buf*16384}')
        for j in range(4): r.append(f'buffer_load_dwordx4 v3, s[20:23], s11 offen offset:{1024*j} lds')
        r.append(f's_add_u32 m0, s8, {buf*28672}')
        for j in range(4): r.append(f'buffer_load_dwordx4 v3, s[20:23], s9 offen offset:{1024*j} lds')
        r.append(f's_add_u32 m0, s8, {buf*28672+4096}')
        for j in range(3): r.append(f'buffer_load_dwordx4 v4, s[20:23], s9 offen offset:{1024*j} lds')
        r.append('s_add_u32 s9, s9, 28672')
        r.append('s_add_u32 s11, s11, 16384')
        return r
    def dma_groups(st):
        g = []; cur = []
        for x in dma(st):
            if x.startswith('s_add_u32 m0') or x.startswith('buffer'):
                cur.append(x)
                if x.startswith('buffer'): g.append(cur); cur = []
            else: g[-1].append(x)
        return g
    pend = []; pst = None
    for st in range(3):
        for x in dma(st):
            i = a.e(x)
            if i.kind == 'vmem': toks[st] = i
        if st == 0:
            for p in range(4):
                a.e(f'buffer_load_dword v{16+p}, v5, s[20:23], s12 offen')
                if p < 3: a.e('s_add_u32 s12, s12, 14336')
    a.e('s_and_b32 s52, s2, 1\ns_lshl_b32 s52, s52, 4\ns_bfe_u32 s53, s2, 0x20001\ns_lshl2_add_u32 s52, s53, s52\ns_bfe_u32 s53, s2, 0x20003\ns_add_u32 s52, s52, s53')
    a.e('s_lshr_b32 s53, s2, 5')
    srd_consts(a, 48, NB_X); srd_consts(a, 40, 276480); srd_consts(a, 44, 54 * 4096); srd_fix(a, 48)
    a.e(f's_mul_i32 s55, s53, 276480\ns_add_u32 s55, s55, {WDP}')
    a.e(f's_mul_i32 s56, s52, 229376\ns_add_u32 s56, s56, {ACT}')
    a.e('s_add_u32 s40, s20, s55\ns_addc_u32 s41, s21, 0\ns_add_u32 s44, s20, s56\ns_addc_u32 s45, s21, 0')
    a.e('s_mul_i32 s54, s3, 5120')
    a.e('v_lshrrev_b32 v21, 1, v2\nv_and_b32 v22, 7, v21\nv_lshlrev_b32 v21, 8, v21')
    a.e('s_and_b32 s55, s52, 1\ns_lshl2_add_u32 s55, s55, s3\nv_xor_b32 v22, s55, v22\nv_lshl_add_u32 v21, v22, 5, v21')
    a.e('v_and_b32 v22, 1, v2\nv_lshl_add_u32 v21, v22, 4, v21')
    a.e(f's_lshr_b32 s55, s52, 1\ns_mul_i32 s55, s55, 163840\ns_mul_i32 s56, s53, 20480\ns_add_u32 s55, s55, s56\ns_add_u32 s55, s55, {HT}')
    a.e(f's_mul_i32 s57, s3, 3072\ns_add_u32 s57, s57, {RESL}')
    for k in range(3):
        a.e(f's_add_u32 m0, s57, {1024*k}')
        a.e('buffer_load_dwordx4 v21, s[20:23], s55 offen lds')
        if k < 2: a.e('s_add_u32 s55, s55, 8192')
    def wreg(i, t):
        n = 5 * i + t
        if n < 64: return f'a[{4*n}:{4*n+3}]'
        if n < 69: return v(136 + 4 * (n - 64), 4)
        return v(216, 4)
    wl = []
    for i in range(14):
        for t in range(5):
            g = [f'buffer_load_dwordx4 {wreg(i,t)}, v{3 if t<4 else 4}, s[40:43], s54 offen' + (f' offset:{1024*t}' if 0 < t < 4 else '')]
            if t == 4: g.append('s_add_u32 s54, s54, 20480')
            wl.append(g)
    for _ in range(WPRO):
        for x in wl.pop(0): a.e(x)
    ACC = 24; SUM = 136; SQ = 144; ONES = 152
    FA = [156, 200]; FB = [184, 228]
    a.e('s_mul_i32 s13, s7, 7168\ns_add_u32 s13, s13, 49152')
    a.e('v_add_u32 v6, s13, v3\nv_add_u32 v7, 57344, v6')
    a.e('v_lshrrev_b32 v12, 2, v2\nv_and_b32 v13, 7, v12\nv_lshlrev_b32 v12, 8, v12')
    a.e('v_and_b32 v14, 3, v2\nv_lshl_add_u32 v12, v14, 3, v12')
    a.e('s_lshl_b32 s14, s6, 2\ns_lshl_b32 s15, s7, 1\ns_or_b32 s14, s14, s15')
    for i in range(4):
        a.e(f's_xor_b32 s15, s14, {i}\nv_xor_b32 v14, s15, v13\nv_lshl_add_u32 v{8+i}, v14, 5, v12')
    for i in range(4): a.e(f'v_mov_b32 v{ONES+i}, 0x3f803f80')
    a.e('v_add_f32 v16, v16, v17\nv_add_f32 v18, v18, v19\nv_add_f32 v16, v16, v18')
    a.e('v_add_u32 v5, 135168, v5')
    a.e('ds_write_b32 v5, v16')
    def reads(kk):
        st, ks = kk >> 1, kk & 1
        buf = st % 3; A = FA[kk & 1]; B = FB[kk & 1]
        r = []
        for i in range(4):
            for hh in range(2):
                r.append(f'ds_read_b64_tr_b16 {v(B+4*i+2*hh,2)}, v{8+i} offset:{buf*16384+ks*8192+hh*4096}')
        for j in range(7):
            if buf < 2: r.append(f'ds_read_b128 {v(A+4*j,4)}, v6 offset:{buf*28672+ks*14336+j*1024}')
            else: r.append(f'ds_read_b128 {v(A+4*j,4)}, v7 offset:{ks*14336+j*1024}')
        return r
    a.waitvm(toks[0]); a.e('s_barrier'); ts(a, 1)
    for x in reads(0): a.e(x)
    nwl = WLOOP
    for kk in range(20):
        st, ks = kk >> 1, kk & 1
        A = FA[kk & 1]; B = FB[kk & 1]
        m = []
        c = lambda r: '0' if kk == 0 else v(r, 4)
        for i in range(2):
            m.append(f'{MF} {v(SUM+4*i,4)}, {v(ONES,4)}, {v(B+4*i,4)}, {c(SUM+4*i)}')
            m.append(f'{MF} {v(SQ+4*i,4)}, {v(B+4*i,4)}, {v(B+4*i,4)}, {c(SQ+4*i)}')
        for j in range(7):
            for i in range(4):
                r = ACC + 16 * j + 4 * i
                m.append(f'{MF} {v(r,4)}, {v(A+4*j,4)}, {v(B+4*i,4)}, {c(r)}')
        fill = []
        if ks == 1 and kk < 19:
            a.e('s_waitcnt lgkmcnt(0)')
            a.waitvm(toks[st + 1]); a.e('s_barrier')
        if kk < 19: fill += reads(kk + 1)
        if ks == 1: pend = dma_groups(st + 3) if st + 3 < 10 else []; pst = st + 3
        seq = interleave(m, fill, start=0)
        out = []; nm = 0
        quota = -(-nwl // (20 - kk)) if kk >= WK0 else 0
        wsp = max(1, 32 // quota) if quota else 0
        for x in seq:
            out.append(x)
            if x.startswith(MF):
                nm += 1
                if nm % DSP == DOFF and pend and (ks == 0 or len(pend) > 5): out += pend.pop(0)
                if quota and nm % wsp == wsp // 2 and len(wl) > 6:
                    out += wl.pop(0); quota -= 1; nwl -= 1
        if ks == 0:
            while pend: out += pend.pop(0)
        for x in out:
            i = a.e(x)
            if i.kind == 'vmem' and i.islds: toks[pst] = i
    ts(a, 2)
    a.e('s_mov_b32 s24, 0x22222222\ns_mov_b32 s25, s24\ns_mov_b32 s26, 0x44444444\ns_mov_b32 s27, s26\ns_mov_b32 s28, 0x88888888\ns_mov_b32 s29, s28')
    a.e('v_and_b32 v12, 15, v2\nv_lshlrev_b32 v12, 3, v12')
    a.e('s_lshl_b32 s15, s14, 7\ns_add_u32 s15, s15, 136192')
    a.e('v_add_u32 v13, s15, v12')
    a.e('s_xor_b32 s15, s15, 256\nv_add_u32 v14, s15, v12')
    CSV = 156
    a.e('v_lshrrev_b32 v15, 4, v2\nv_lshlrev_b32 v15, 4, v15')
    a.e('s_mul_i32 s13, s7, 448\ns_add_u32 s13, s13, 135168\nv_add_u32 v15, s13, v15')
    for i in range(2):
        a.e(f'v_cndmask_b32 v{SUM+4*i+1}, v{SQ+4*i}, v{SQ+4*i+1}, s[24:25]')
        a.e(f'v_cndmask_b32 v{SUM+4*i+1}, v{SUM+4*i+1}, v{SQ+4*i+2}, s[26:27]')
        a.e(f'v_cndmask_b32 v{SUM+4*i+1}, v{SUM+4*i+1}, v{SQ+4*i+3}, s[28:29]')
    a.e('s_mov_b32 exec_lo, 0x00f0000f\ns_mov_b32 exec_hi, 0xf0000f00')
    for i in range(2): a.e(f'ds_write_b64 v13, {v(SUM+4*i,2)} offset:{128*i}')
    a.e('s_mov_b64 exec, -1')
    for j in range(7): a.e(f'ds_read_b128 {v(CSV+4*j,4)}, v15 offset:{64*j}')
    a.e('s_waitcnt lgkmcnt(0)\ns_barrier')
    ST = 184
    for i in range(4):
        a.e(f'ds_read_b64 {v(ST+4*i,2)}, v{13+(i>>1)} offset:{128*(i&1)}')
    while wl:
        for x in wl.pop(0): a.e(x)
    a.e('s_lshr_b32 s16, s5, 1\ns_mul_i32 s16, s16, 7')
    a.e('s_and_b32 s17, s5, 1')
    a.e('s_lshl_b32 s18, s4, 1\ns_add_u32 s18, s18, s6\ns_mul_i32 s18, s18, 229376')
    a.e(f's_add_u32 s18, s18, {ACT}\ns_lshl_b32 s19, s16, 12\ns_add_u32 s18, s18, s19')
    a.e('s_lshl1_add_u32 s19, s17, s7\ns_lshl_b32 s19, s19, 8\ns_add_u32 s34, s18, s19\ns_add_u32 s34, s34, 12288')
    a.e('s_lshl_b32 s35, s7, 11\ns_add_u32 s18, s18, s35')
    a.e('s_lshl_b32 s19, s17, 14\ns_add_u32 s30, s18, s19')
    a.e('s_lshl_b32 s19, s7, 9\ns_add_u32 s32, s30, s19\ns_add_u32 s32, s32, 8192')
    a.e('s_lshl_b32 s19, s7, 12\ns_add_u32 s30, s30, s19')
    for r in (30, 32): a.e(f's_xor_b32 s{r+1}, s{r}, 2048')
    a.e('v_and_b32 v16, 31, v2\nv_lshlrev_b32 v16, 4, v16\nv_lshrrev_b32 v17, 5, v2\nv_lshl_add_u32 v16, v17, 10, v16')
    a.e('v_and_b32 v17, 0x100, v16\nv_xor_b32 v18, v16, v17\nv_lshl_or_b32 v17, v17, 3, v18\nv_xor_b32 v17, s35, v17')
    for i in range(4):
        t = ST + 4 * i
        a.e(f'v_mul_f32 v{t}, 0xbacccccd, v{t}')
        a.e(f'v_mul_f32 v{t+1}, 0x3acccccd, v{t+1}')
        a.e(f'v_fma_f32 v{t+1}, -v{t}, v{t}, v{t+1}\nv_max_f32 v{t+1}, 0, v{t+1}\nv_add_f32 v{t+1}, 0x3727c5ac, v{t+1}')
    for i in range(4): a.e(f'v_rsq_f32 v{ST+4*i+1}, v{ST+4*i+1}')
    for i in range(4):
        t = ST + 4 * i
        a.e(f'v_mul_f32 v{t+2}, v{t+1}, v{t+1}\nv_mul_f32 v{t+1}, 0xbfb8aa3b, v{t+1}')
    MX = 200
    a.e('s_mov_b32 s24, 0\ns_mov_b32 s25, -1')
    for p in range(2):
        a.e(f'v_cndmask_b32 v{MX+4*p+1}, v{ST+8*p+1}, v{ST+8*p+5}, s[24:25]')
        a.e(f'v_cndmask_b32 v{MX+4*p+2}, v{ST+8*p+2}, v{ST+8*p+6}, s[24:25]')
    for j in range(7):
        for i in range(4):
            r = ACC + 16 * j + 4 * i
            for h in range(2):
                a.e(f'v_pk_fma_f32 {v(r+2*h,2)}, {v(CSV+4*j+2*h,2)}, {v(ST+4*i,2)}, {v(r+2*h,2)} op_sel_hi:[1,0,1]')
    for p in range(2):
        for k in range(4):
            a.e(f'v_permlane32_swap_b32 v{ACC+96+8*p+k}, v{ACC+96+8*p+4+k}')
    TM = 208; OUT = 228
    def swiglu(G, U, st, tm, out):
        for h in range(2): a.e(f'v_pk_mul_f32 {v(tm+2*h,2)}, {v(G+2*h,2)}, {v(st,2)} op_sel:[0,1] op_sel_hi:[1,1]')
        for k in range(4): a.e(f'v_exp_f32 v{tm+k}, v{tm+k}')
        for h in range(2): a.e(f'v_pk_mul_f32 {v(G+2*h,2)}, {v(G+2*h,2)}, {v(U+2*h,2)}')
        for h in range(2): a.e(f'v_pk_add_f32 {v(tm+2*h,2)}, {v(tm+2*h,2)}, 1.0 op_sel_hi:[1,0]')
        for k in range(4): a.e(f'v_rcp_f32 v{tm+k}, v{tm+k}')
        for h in range(2): a.e(f'v_pk_mul_f32 {v(G+2*h,2)}, {v(G+2*h,2)}, {v(st+2,2)} op_sel_hi:[1,0]')
        for h in range(2): a.e(f'v_pk_mul_f32 {v(G+2*h,2)}, {v(G+2*h,2)}, {v(tm+2*h,2)}')
        for h in range(2): a.e(f'v_cvt_pk_bf16_f32 v{out+h}, v{G+2*h}, v{G+2*h+1}')
    for p in range(2):
        swiglu(ACC + 96 + 8 * p, ACC + 96 + 8 * p + 4, MX + 4 * p, TM + 4 * p, 252 + 2 * p)
    for h in range(2): a.e(f'v_permlane16_swap_b32 v{252+h}, v{254+h}')
    a.e(f'buffer_store_dwordx4 v[252:255], v17, s[20:23], s34 offen sc1')
    for i in range(4):
        o = 244 + 2 * i
        swiglu(ACC + 32 + 4 * i, ACC + 80 + 4 * i, ST + 4 * i, TM + 4 * (i & 1), o)
        if i & 1:
            for h in range(2): a.e(f'v_permlane32_swap_b32 v{o-2+h}, v{o+h}')
            a.e(f'buffer_store_dwordx4 {v(o-2,4)}, v16, s[20:23], s{32+(i>>1)} offen sc1')
    for i in range(4):
        o = OUT + 4 * i
        for j in range(2): swiglu(ACC + 16 * j + 4 * i, ACC + 16 * (j + 3) + 4 * i, ST + 4 * i, TM + 4 * j, o + 2 * j)
        a.e(f'buffer_store_dwordx4 {v(o,4)}, v3, s[20:23], s{30+(i>>1)} offen offset:{1024*(i&1)} sc1')
    a.e('s_lshl_b32 s24, s3, 12')
    for i in range(4):
        a.e(f's_xor_b32 s25, s3, {i}\ns_lshl_b32 s25, s25, 10\ns_add_u32 s25, s25, s24\nv_add_u32 v{6+i}, s25, v3')
    a.e('v_lshrrev_b32 v11, 4, v2\nv_and_b32 v12, 15, v2')
    a.e('s_movk_i32 s30, 640\nv_mul_u32_u24 v13, s30, v11\nv_lshl_add_u32 v13, v12, 3, v13\nv_add_u32 v13, s57, v13')
    a.e('s_lshl_b32 s30, s52, 6\ns_lshl4_add_u32 s30, s3, s30\nv_add_u32 v14, s30, v12\ns_movk_i32 s30, 1280\nv_mul_u32_u24 v14, s30, v14')
    a.e('v_mul_u32_u24 v11, 40, v11\nv_add_u32 v14, v14, v11\ns_mul_i32 s31, s53, 160')
    a.e('v_lshlrev_b32 v12, 2, v12\nv_mov_b32 v15, 1')
    a.e(f's_lshl_b32 s26, s4, 9\ns_lshl2_add_u32 s26, s5, s26\ns_add_u32 s26, s26, {FL}')
    a.e(f's_lshr_b32 s27, s52, 1\ns_lshl_b32 s27, s27, 9\ns_add_u32 s27, s27, {FL}')
    a.e(f's_mov_b32 s28, {SPINMAX}')
    a.e('s_waitcnt vmcnt(0)\ns_barrier'); ts(a, 3)
    a.e('s_cmp_lg_u32 s3, 0\ns_cbranch_scc1 L2_go')
    a.e('s_mov_b64 exec, 1')
    a.e('buffer_store_dword v15, v12, s[20:23], s26 offen sc1')
    a.e('s_mov_b64 exec, -1')
    a.e('L2_poll:')
    a.e('buffer_load_dword v17, v12, s[20:23], s27 offen sc1')
    a.e('s_sub_u32 s28, s28, 1\ns_cbranch_scc1 L2_go')
    a.e('s_waitcnt vmcnt(0)')
    a.e('v_cmp_ne_u32 vcc, 0, v17')
    a.e('s_nop 1\ns_cmp_eq_u64 vcc, -1\ns_cbranch_scc0 L2_poll')
    a.e('L2_go:')
    a.e('s_waitcnt vmcnt(0)\ns_barrier'); ts(a, 4)
    a.reset()
    AC3 = 24; SLOT = [104, 120, 156, 172, 188, 220, 236]; NS = len(SLOT)
    def loads(i):
        b = SLOT[i % NS]
        r = [f's_mov_b32 s27, {16384*i}']
        for k in range(4): r.append(f'buffer_load_dwordx4 {v(b+4*k,4)}, v{6+k}, s[44:47], s27 offen sc1')
        return r
    for i in range(NS):
        for x in loads(i): a.e(x)
    for i in range(14):
        b = SLOT[i % NS]
        m = []
        for k in range(4):
            for t in range(5):
                r = AC3 + 16 * t + 4 * k
                m.append(f'{MF} {v(r,4)}, {wreg(i,t)}, {v(b+4*k,4)}, {"0" if i==0 else v(r,4)}')
        f = loads(i - 1 + NS) if (i >= 1 and i - 1 + NS < 14) else []
        out = []
        for n, x in enumerate(m):
            out.append(x)
            if f and n >= 2 and n % 4 == 2:
                y = f.pop(0); out.append(y)
                if y.startswith('s_'): out.append(f.pop(0))
        out += f
        for x in out: a.e(x)
    ts(a, 5)
    ACC = AC3
    for k in range(1, 4):
        a.e(f's_xor_b32 s25, s3, {k}\ns_mul_i32 s25, s25, 15360\ns_add_u32 s25, s25, {5120*(k-1)}\nv_add_u32 v{5+k}, s25, v3')
    a.e('s_mul_i32 s25, s3, 15360\nv_add_u32 v5, s25, v3')
    RES = 104
    for t in range(5): a.e(f'ds_read_b64_tr_b16 {v(RES+2*t,2)}, v13 offset:{128*t}')
    for k in range(1, 4):
        for t in range(5): a.e(f'ds_write_b128 v{5+k}, {v(ACC+16*t+4*k,4)} offset:{1024*t}')
    a.e('s_mov_b32 s32, 0xffff0000')
    RF = 116
    for t in range(5):
        for h in range(2):
            a.e(f'v_lshlrev_b32 v{RF+4*t+2*h}, 16, v{RES+2*t+h}\nv_and_b32 v{RF+4*t+2*h+1}, s32, v{RES+2*t+h}')
        for h in range(2): a.e(f'v_pk_add_f32 {v(ACC+16*t+2*h,2)}, {v(ACC+16*t+2*h,2)}, {v(RF+4*t+2*h,2)}')
    a.e('s_waitcnt lgkmcnt(0)\ns_barrier')
    P = 156
    for t in range(5):
        for k in range(3): a.e(f'ds_read_b128 {v(P+12*t+4*k,4)}, v5 offset:{5120*k+1024*t}')
    O = 104
    for t in range(5):
        for h in range(2):
            a.e(f'v_pk_add_f32 {v(ACC+16*t+2*h,2)}, {v(ACC+16*t+2*h,2)}, {v(P+12*t+2*h,2)}')
            a.e(f'v_pk_add_f32 {v(P+12*t+4+2*h,2)}, {v(P+12*t+4+2*h,2)}, {v(P+12*t+8+2*h,2)}')
        for h in range(2):
            a.e(f'v_pk_add_f32 {v(ACC+16*t+2*h,2)}, {v(ACC+16*t+2*h,2)}, {v(P+12*t+4+2*h,2)}')
        for h in range(2): a.e(f'v_cvt_pk_bf16_f32 v{O+2*t+h}, v{ACC+16*t+2*h}, v{ACC+16*t+2*h+1}')
    a.e(f'buffer_store_dwordx4 {v(O,4)}, v14, s[48:51], s31 offen{OSC}')
    a.e(f'buffer_store_dwordx4 {v(O+4,4)}, v14, s[48:51], s31 offen offset:16{OSC}')
    a.e(f'buffer_store_dwordx2 {v(O+8,2)}, v14, s[48:51], s31 offen offset:32{OSC}')
    ts_end(a, 1, 6)
    a.e('L2_end:\ns_endpgm')
    return a.text(), 512

def build(extra_empty=0):
    ks = [('conv_kernel', lambda: K1P.k1p(sys.modules[__name__]), 256, 81920 + 40960 + 1024),
          (NAME + '_kernel', k23, 256, K23_LDS)]
    hdr = ['; generated by dev/gen3.py: 2-kernel pipeline (LN1 + shift conv + long conv + weight packing; LN2 + gate/up GEMM + down GEMM)']
    for n, f, g, l in ks: hdr.append(f'; @launch kernel={n} grid=({g},1,1) block=(256,1,1) lds={l}')
    for i in range(extra_empty): hdr.append(f'; @launch kernel=empty_kernel grid=(256,1,1) block=(256,1,1) lds=0')
    out = '\n'.join(hdr) + '\n.amdgcn_target "amdgcn-amd-amdhsa--gfx950"\n.text\n'
    desc = '.section .rodata,"a"\n'
    if extra_empty: ks = ks + [('empty_kernel', lambda: ('  s_endpgm\n', 64), 256, 0)]
    for n, f, g, l in ks:
        body, nv = f()
        out += f'.globl {n}\n.p2align 8\n.type {n},@function\n{n}:\n{body}'
        desc += f'''.p2align 6
.amdhsa_kernel {n}
  .amdhsa_next_free_vgpr {nv}
  .amdhsa_next_free_sgpr 102
  .amdhsa_accum_offset {min(nv,256)}
  .amdhsa_group_segment_fixed_size 0
  .amdhsa_kernarg_size 104
  .amdhsa_user_sgpr_count 2
  .amdhsa_user_sgpr_kernarg_segment_ptr 1
  .amdhsa_system_sgpr_workgroup_id_x 1
  .amdhsa_float_denorm_mode_32 3
.end_amdhsa_kernel
'''
    return out + 'Lcode_end:\n' + desc

if __name__ == '__main__':
    ee = int(sys.argv[2]) if len(sys.argv) > 2 else 0
    if len(sys.argv) > 3 and sys.argv[3] == '1': TSON = True
    for kv in sys.argv[4:]:
        k_, v_ = kv.split('=')
        globals()[k_] = eval(v_)
    open(sys.argv[1], 'w').write(build(ee))
```

```python
import sys
from asmlib import *
import k1p as K1P

NAME = 'sequential_preLN__ssm_conv_h3__swiglu_ffn__prompt'
def al(x, a): return (x + a - 1) // a * a
XSTR = 82048
XA = 0
HT = al(XA + 64 * XSTR, 4096)
W1P = HT + 2621440
WDP = W1P + 16 * 20 * 14 * 1024
CS = WDP + 8 * 54 * 5 * 1024
ACT = al(CS + 4 * 14336, 4096)
PST = ACT + 32 * 56 * 4 * 1024
FL = PST + 65536
WSEND = FL + 16384
HSC1 = ''
PSC1 = ''
OSC = ''
NTS = 'xwpf'
G1PRE = 2
LD0 = 10
LDS_ = 24
NPRE = 2
POLLC = 2
POLLD = 40
CPF = 1
GBAR = 1
PFM = ['']
WSOFF = 0
WN0 = 0
SLP = 8
CPF2 = 1
NB_X = 2621440
NB_W = 2211840
LOG2E = 0x3fb8aa3b
MF = 'v_mfma_f32_16x16x32_bf16'

TSON = False
PF2 = False
DIAG = ''
DSP = 5
DOFF = 3
TSB = WSEND
def ts(a, i):
    if TSON:
        a.e(f's_memrealtime s[{80+2*i}:{81+2*i}]')
        if i in (1, 2): a.e(f's_memtime s[{72+2*i}:{73+2*i}]')
def ts_end(a, kid, n):
    if not TSON: return
    ts(a, n)
    a.e('s_waitcnt vmcnt(0) lgkmcnt(0)')
    ts(a, n + 1)
    a.e('s_getreg_b32 s98, hwreg(HW_REG_XCC_ID)\ns_getreg_b32 s99, hwreg(HW_REG_HW_ID)')
    a.e('s_mov_b64 exec, 1')
    a.e('v_readfirstlane_b32 s79, v0')
    a.e('s_lshr_b32 s79, s79, 6\ns_lshl2_add_u32 s79, s2, s79\ns_lshl_b32 s79, s79, 6')
    a.e(f's_add_u32 s79, s79, {TSB + kid * 131072}')
    a.e('s_waitcnt lgkmcnt(0)')
    for i in range(8): a.e(f'v_mov_b32 v{4+i}, s{80+2*i}' if i < n + 2 else f'v_mov_b32 v{4+i}, 0')
    a.e('v_mov_b32 v12, s98\nv_mov_b32 v13, s99\nv_mov_b32 v14, 0\ns_sub_u32 s76, s76, s74\nv_mov_b32 v15, s76\nv_mov_b32 v1, 0')
    a.e('s_mov_b32 s22, 0x10000000')
    for i in range(3): a.e(f'buffer_store_dwordx4 v[{4+4*i}:{7+4*i}], v1, s[20:23], s79 offen offset:{16*i}')

def code_pf(a, label):
    if not CPF: return
    a.e('s_getpc_b64 s[56:57]')
    a.e(f'Lpc_{label}:')
    a.e(f's_mov_b32 s58, Lcode_end-Lpc_{label}\ns_mov_b32 s59, 0x20000\ns_and_b32 s57, s57, 0xffff')
    a.e('v_lshlrev_b32 v254, 7, v0')
    a.e('buffer_load_dword v254, v254, s[56:59], 0 offen')

def srd_consts(a, base, size):
    a.e(f's_mov_b32 s{base+2}, {size}')
    a.e(f's_mov_b32 s{base+3}, 0x20000')
def srd_fix(a, base):
    if base == 20 and WSOFF: a.e(f's_add_u32 s20, s20, {WSOFF}\ns_addc_u32 s21, s21, 0')
    a.e(f's_and_b32 s{base+1}, s{base+1}, 0xffff')

RESL = 135168 + 2048
K23_LDS = RESL + 12288
WPRO = 0
WLOOP = 33
WK0 = 14
SPINMAX = 200000
def k23():
    a = Asm()
    a.e('s_cmp_ge_u32 s2, 256\ns_cbranch_scc1 L2_end'); ts(a, 0)
    a.e('s_load_dwordx2 s[20:21], s[0:1], 96')
    a.e('s_load_dwordx2 s[48:49], s[0:1], 80')
    if CPF2: code_pf(a, 'k23')
    srd_consts(a, 20, WSEND)
    a.e('v_lshrrev_b32 v1, 6, v0\nv_and_b32 v2, 63, v0')
    a.e('v_readfirstlane_b32 s3, v1')
    a.e('s_and_b32 s4, s2, 1\ns_lshl_b32 s4, s4, 3\ns_bfe_u32 s5, s2, 0x30003\ns_add_u32 s4, s4, s5')
    a.e('s_bfe_u32 s5, s2, 0x20001\ns_lshl_b32 s5, s5, 2\ns_lshr_b32 s6, s2, 6\ns_add_u32 s5, s5, s6')
    a.e('s_lshr_b32 s6, s3, 1\ns_and_b32 s7, s3, 1')
    a.e('v_lshlrev_b32 v3, 4, v2\nv_add_u32 v4, 4096, v3')
    a.e('s_mul_i32 s8, s3, 7168')
    a.e(f's_mul_i32 s9, s5, 286720\ns_add_u32 s9, s9, s8\ns_add_u32 s9, s9, {W1P}')
    a.e('s_add_u32 s8, s8, 49152')
    a.e('s_lshl_b32 s10, s3, 12')
    a.e(f's_mul_i32 s11, s4, 163840\ns_add_u32 s11, s11, s10\ns_add_u32 s11, s11, {HT}')
    a.e(f's_mul_i32 s12, s5, 896\ns_add_u32 s12, s12, {CS}')
    a.e('v_min_u32 v5, 223, v0\nv_lshlrev_b32 v5, 2, v5')
    a.e('s_waitcnt lgkmcnt(0)')
    srd_fix(a, 20)
    toks = {}
    def dma(st):
        buf = st % 3
        r = []
        r.append(f's_add_u32 m0, s10, {buf*16384}')
        for j in range(4): r.append(f'buffer_load_dwordx4 v3, s[20:23], s11 offen offset:{1024*j} lds')
        r.append(f's_add_u32 m0, s8, {buf*28672}')
        for j in range(4): r.append(f'buffer_load_dwordx4 v3, s[20:23], s9 offen offset:{1024*j} lds')
        r.append(f's_add_u32 m0, s8, {buf*28672+4096}')
        for j in range(3): r.append(f'buffer_load_dwordx4 v4, s[20:23], s9 offen offset:{1024*j} lds')
        r.append('s_add_u32 s9, s9, 28672')
        r.append('s_add_u32 s11, s11, 16384')
        return r
    def dma_groups(st):
        g = []; cur = []
        for x in dma(st):
            if x.startswith('s_add_u32 m0') or x.startswith('buffer'):
                cur.append(x)
                if x.startswith('buffer'): g.append(cur); cur = []
            else: g[-1].append(x)
        return g
    pend = []; pst = None
    for st in range(3):
        for x in dma(st):
            i = a.e(x)
            if i.kind == 'vmem': toks[st] = i
        if st == 0:
            for p in range(4):
                a.e(f'buffer_load_dword v{16+p}, v5, s[20:23], s12 offen')
                if p < 3: a.e('s_add_u32 s12, s12, 14336')
    a.e('s_and_b32 s52, s2, 1\ns_lshl_b32 s52, s52, 4\ns_bfe_u32 s53, s2, 0x20001\ns_lshl2_add_u32 s52, s53, s52\ns_bfe_u32 s53, s2, 0x20003\ns_add_u32 s52, s52, s53')
    a.e('s_lshr_b32 s53, s2, 5')
    srd_consts(a, 48, NB_X); srd_consts(a, 40, 276480); srd_consts(a, 44, 54 * 4096); srd_fix(a, 48)
    a.e(f's_mul_i32 s55, s53, 276480\ns_add_u32 s55, s55, {WDP}')
    a.e(f's_mul_i32 s56, s52, 229376\ns_add_u32 s56, s56, {ACT}')
    a.e('s_add_u32 s40, s20, s55\ns_addc_u32 s41, s21, 0\ns_add_u32 s44, s20, s56\ns_addc_u32 s45, s21, 0')
    a.e('s_mul_i32 s54, s3, 5120')
    a.e('v_lshrrev_b32 v21, 1, v2\nv_and_b32 v22, 7, v21\nv_lshlrev_b32 v21, 8, v21')
    a.e('s_and_b32 s55, s52, 1\ns_lshl2_add_u32 s55, s55, s3\nv_xor_b32 v22, s55, v22\nv_lshl_add_u32 v21, v22, 5, v21')
    a.e('v_and_b32 v22, 1, v2\nv_lshl_add_u32 v21, v22, 4, v21')
    a.e(f's_lshr_b32 s55, s52, 1\ns_mul_i32 s55, s55, 163840\ns_mul_i32 s56, s53, 20480\ns_add_u32 s55, s55, s56\ns_add_u32 s55, s55, {HT}')
    a.e(f's_mul_i32 s57, s3, 3072\ns_add_u32 s57, s57, {RESL}')
    for k in range(3):
        a.e(f's_add_u32 m0, s57, {1024*k}')
        a.e('buffer_load_dwordx4 v21, s[20:23], s55 offen lds')
        if k < 2: a.e('s_add_u32 s55, s55, 8192')
    def wreg(i, t):
        n = 5 * i + t
        if n < 64: return f'a[{4*n}:{4*n+3}]'
        if n < 69: return v(136 + 4 * (n - 64), 4)
        return v(216, 4)
    wl = []
    for i in range(14):
        for t in range(5):
            g = [f'buffer_load_dwordx4 {wreg(i,t)}, v{3 if t<4 else 4}, s[40:43], s54 offen' + (f' offset:{1024*t}' if 0 < t < 4 else '')]
            if t == 4: g.append('s_add_u32 s54, s54, 20480')
            wl.append(g)
    for _ in range(WPRO):
        for x in wl.pop(0): a.e(x)
    ACC = 24; SUM = 136; SQ = 144; ONES = 152
    FA = [156, 200]; FB = [184, 228]
    a.e('s_mul_i32 s13, s7, 7168\ns_add_u32 s13, s13, 49152')
    a.e('v_add_u32 v6, s13, v3\nv_add_u32 v7, 57344, v6')
    a.e('v_lshrrev_b32 v12, 2, v2\nv_and_b32 v13, 7, v12\nv_lshlrev_b32 v12, 8, v12')
    a.e('v_and_b32 v14, 3, v2\nv_lshl_add_u32 v12, v14, 3, v12')
    a.e('s_lshl_b32 s14, s6, 2\ns_lshl_b32 s15, s7, 1\ns_or_b32 s14, s14, s15')
    for i in range(4):
        a.e(f's_xor_b32 s15, s14, {i}\nv_xor_b32 v14, s15, v13\nv_lshl_add_u32 v{8+i}, v14, 5, v12')
    for i in range(4): a.e(f'v_mov_b32 v{ONES+i}, 0x3f803f80')
    a.e('v_add_f32 v16, v16, v17\nv_add_f32 v18, v18, v19\nv_add_f32 v16, v16, v18')
    a.e('v_add_u32 v5, 135168, v5')
    a.e('ds_write_b32 v5, v16')
    def reads(kk):
        st, ks = kk >> 1, kk & 1
        buf = st % 3; A = FA[kk & 1]; B = FB[kk & 1]
        r = []
        for i in range(4):
            for hh in range(2):
                r.append(f'ds_read_b64_tr_b16 {v(B+4*i+2*hh,2)}, v{8+i} offset:{buf*16384+ks*8192+hh*4096}')
        for j in range(7):
            if buf < 2: r.append(f'ds_read_b128 {v(A+4*j,4)}, v6 offset:{buf*28672+ks*14336+j*1024}')
            else: r.append(f'ds_read_b128 {v(A+4*j,4)}, v7 offset:{ks*14336+j*1024}')
        return r
    a.waitvm(toks[0]); a.e('s_barrier'); ts(a, 1)
    for x in reads(0): a.e(x)
    nwl = WLOOP
    for kk in range(20):
        st, ks = kk >> 1, kk & 1
        A = FA[kk & 1]; B = FB[kk & 1]
        m = []
        c = lambda r: '0' if kk == 0 else v(r, 4)
        for i in range(2):
            m.append(f'{MF} {v(SUM+4*i,4)}, {v(ONES,4)}, {v(B+4*i,4)}, {c(SUM+4*i)}')
            m.append(f'{MF} {v(SQ+4*i,4)}, {v(B+4*i,4)}, {v(B+4*i,4)}, {c(SQ+4*i)}')
        for j in range(7):
            for i in range(4):
                r = ACC + 16 * j + 4 * i
                m.append(f'{MF} {v(r,4)}, {v(A+4*j,4)}, {v(B+4*i,4)}, {c(r)}')
        fill = []
        if ks == 1 and kk < 19:
            a.e('s_waitcnt lgkmcnt(0)')
            a.waitvm(toks[st + 1]); a.e('s_barrier')
        if kk < 19: fill += reads(kk + 1)
        if ks == 1: pend = dma_groups(st + 3) if st + 3 < 10 else []; pst = st + 3
        seq = interleave(m, fill, start=0)
        out = []; nm = 0
        quota = -(-nwl // (20 - kk)) if kk >= WK0 else 0
        wsp = max(1, 32 // quota) if quota else 0
        for x in seq:
            out.append(x)
            if x.startswith(MF):
                nm += 1
                if nm % DSP == DOFF and pend and (ks == 0 or len(pend) > 5): out += pend.pop(0)
                if quota and nm % wsp == wsp // 2 and len(wl) > 6:
                    out += wl.pop(0); quota -= 1; nwl -= 1
        if ks == 0:
            while pend: out += pend.pop(0)
        for x in out:
            i = a.e(x)
            if i.kind == 'vmem' and i.islds: toks[pst] = i
    ts(a, 2)
    a.e('s_mov_b32 s24, 0x22222222\ns_mov_b32 s25, s24\ns_mov_b32 s26, 0x44444444\ns_mov_b32 s27, s26\ns_mov_b32 s28, 0x88888888\ns_mov_b32 s29, s28')
    a.e('v_and_b32 v12, 15, v2\nv_lshlrev_b32 v12, 3, v12')
    a.e('s_lshl_b32 s15, s14, 7\ns_add_u32 s15, s15, 136192')
    a.e('v_add_u32 v13, s15, v12')
    a.e('s_xor_b32 s15, s15, 256\nv_add_u32 v14, s15, v12')
    CSV = 156
    a.e('v_lshrrev_b32 v15, 4, v2\nv_lshlrev_b32 v15, 4, v15')
    a.e('s_mul_i32 s13, s7, 448\ns_add_u32 s13, s13, 135168\nv_add_u32 v15, s13, v15')
    for i in range(2):
        a.e(f'v_cndmask_b32 v{SUM+4*i+1}, v{SQ+4*i}, v{SQ+4*i+1}, s[24:25]')
        a.e(f'v_cndmask_b32 v{SUM+4*i+1}, v{SUM+4*i+1}, v{SQ+4*i+2}, s[26:27]')
        a.e(f'v_cndmask_b32 v{SUM+4*i+1}, v{SUM+4*i+1}, v{SQ+4*i+3}, s[28:29]')
    a.e('s_mov_b32 exec_lo, 0x00f0000f\ns_mov_b32 exec_hi, 0xf0000f00')
    for i in range(2): a.e(f'ds_write_b64 v13, {v(SUM+4*i,2)} offset:{128*i}')
    a.e('s_mov_b64 exec, -1')
    for j in range(7): a.e(f'ds_read_b128 {v(CSV+4*j,4)}, v15 offset:{64*j}')
    a.e('s_waitcnt lgkmcnt(0)\ns_barrier')
    ST = 184
    for i in range(4):
        a.e(f'ds_read_b64 {v(ST+4*i,2)}, v{13+(i>>1)} offset:{128*(i&1)}')
    while wl:
        for x in wl.pop(0): a.e(x)
    a.e('s_lshr_b32 s16, s5, 1\ns_mul_i32 s16, s16, 7')
    a.e('s_and_b32 s17, s5, 1')
    a.e('s_lshl_b32 s18, s4, 1\ns_add_u32 s18, s18, s6\ns_mul_i32 s18, s18, 229376')
    a.e(f's_add_u32 s18, s18, {ACT}\ns_lshl_b32 s19, s16, 12\ns_add_u32 s18, s18, s19')
    a.e('s_lshl1_add_u32 s19, s17, s7\ns_lshl_b32 s19, s19, 8\ns_add_u32 s34, s18, s19\ns_add_u32 s34, s34, 12288')
    a.e('s_lshl_b32 s35, s7, 11\ns_add_u32 s18, s18, s35')
    a.e('s_lshl_b32 s19, s17, 14\ns_add_u32 s30, s18, s19')
    a.e('s_lshl_b32 s19, s7, 9\ns_add_u32 s32, s30, s19\ns_add_u32 s32, s32, 8192')
    a.e('s_lshl_b32 s19, s7, 12\ns_add_u32 s30, s30, s19')
    for r in (30, 32): a.e(f's_xor_b32 s{r+1}, s{r}, 2048')
    a.e('v_and_b32 v16, 31, v2\nv_lshlrev_b32 v16, 4, v16\nv_lshrrev_b32 v17, 5, v2\nv_lshl_add_u32 v16, v17, 10, v16')
    a.e('v_and_b32 v17, 0x100, v16\nv_xor_b32 v18, v16, v17\nv_lshl_or_b32 v17, v17, 3, v18\nv_xor_b32 v17, s35, v17')
    for i in range(4):
        t = ST + 4 * i
        a.e(f'v_mul_f32 v{t}, 0xbacccccd, v{t}')
        a.e(f'v_mul_f32 v{t+1}, 0x3acccccd, v{t+1}')
        a.e(f'v_fma_f32 v{t+1}, -v{t}, v{t}, v{t+1}\nv_max_f32 v{t+1}, 0, v{t+1}\nv_add_f32 v{t+1}, 0x3727c5ac, v{t+1}')
    for i in range(4): a.e(f'v_rsq_f32 v{ST+4*i+1}, v{ST+4*i+1}')
    for i in range(4):
        t = ST + 4 * i
        a.e(f'v_mul_f32 v{t+2}, v{t+1}, v{t+1}\nv_mul_f32 v{t+1}, 0xbfb8aa3b, v{t+1}')
    MX = 200
    a.e('s_mov_b32 s24, 0\ns_mov_b32 s25, -1')
    for p in range(2):
        a.e(f'v_cndmask_b32 v{MX+4*p+1}, v{ST+8*p+1}, v{ST+8*p+5}, s[24:25]')
        a.e(f'v_cndmask_b32 v{MX+4*p+2}, v{ST+8*p+2}, v{ST+8*p+6}, s[24:25]')
    for j in range(7):
        for i in range(4):
            r = ACC + 16 * j + 4 * i
            for h in range(2):
                a.e(f'v_pk_fma_f32 {v(r+2*h,2)}, {v(CSV+4*j+2*h,2)}, {v(ST+4*i,2)}, {v(r+2*h,2)} op_sel_hi:[1,0,1]')
    for p in range(2):
        for k in range(4):
            a.e(f'v_permlane32_swap_b32 v{ACC+96+8*p+k}, v{ACC+96+8*p+4+k}')
    TM = 208; OUT = 228
    def swiglu(G, U, st, tm, out):
        for h in range(2): a.e(f'v_pk_mul_f32 {v(tm+2*h,2)}, {v(G+2*h,2)}, {v(st,2)} op_sel:[0,1] op_sel_hi:[1,1]')
        for k in range(4): a.e(f'v_exp_f32 v{tm+k}, v{tm+k}')
        for h in range(2): a.e(f'v_pk_mul_f32 {v(G+2*h,2)}, {v(G+2*h,2)}, {v(U+2*h,2)}')
        for h in range(2): a.e(f'v_pk_add_f32 {v(tm+2*h,2)}, {v(tm+2*h,2)}, 1.0 op_sel_hi:[1,0]')
        for k in range(4): a.e(f'v_rcp_f32 v{tm+k}, v{tm+k}')
        for h in range(2): a.e(f'v_pk_mul_f32 {v(G+2*h,2)}, {v(G+2*h,2)}, {v(st+2,2)} op_sel_hi:[1,0]')
        for h in range(2): a.e(f'v_pk_mul_f32 {v(G+2*h,2)}, {v(G+2*h,2)}, {v(tm+2*h,2)}')
        for h in range(2): a.e(f'v_cvt_pk_bf16_f32 v{out+h}, v{G+2*h}, v{G+2*h+1}')
    for p in range(2):
        swiglu(ACC + 96 + 8 * p, ACC + 96 + 8 * p + 4, MX + 4 * p, TM + 4 * p, 252 + 2 * p)
    for h in range(2): a.e(f'v_permlane16_swap_b32 v{252+h}, v{254+h}')
    a.e(f'buffer_store_dwordx4 v[252:255], v17, s[20:23], s34 offen sc1')
    for i in range(4):
        o = 244 + 2 * i
        swiglu(ACC + 32 + 4 * i, ACC + 80 + 4 * i, ST + 4 * i, TM + 4 * (i & 1), o)
        if i & 1:
            for h in range(2): a.e(f'v_permlane32_swap_b32 v{o-2+h}, v{o+h}')
            a.e(f'buffer_store_dwordx4 {v(o-2,4)}, v16, s[20:23], s{32+(i>>1)} offen sc1')
    for i in range(4):
        o = OUT + 4 * i
        for j in range(2): swiglu(ACC + 16 * j + 4 * i, ACC + 16 * (j + 3) + 4 * i, ST + 4 * i, TM + 4 * j, o + 2 * j)
        a.e(f'buffer_store_dwordx4 {v(o,4)}, v3, s[20:23], s{30+(i>>1)} offen offset:{1024*(i&1)} sc1')
    a.e('s_lshl_b32 s24, s3, 12')
    for i in range(4):
        a.e(f's_xor_b32 s25, s3, {i}\ns_lshl_b32 s25, s25, 10\ns_add_u32 s25, s25, s24\nv_add_u32 v{6+i}, s25, v3')
    a.e('v_lshrrev_b32 v11, 4, v2\nv_and_b32 v12, 15, v2')
    a.e('s_movk_i32 s30, 640\nv_mul_u32_u24 v13, s30, v11\nv_lshl_add_u32 v13, v12, 3, v13\nv_add_u32 v13, s57, v13')
    a.e('s_lshl_b32 s30, s52, 6\ns_lshl4_add_u32 s30, s3, s30\nv_add_u32 v14, s30, v12\ns_movk_i32 s30, 1280\nv_mul_u32_u24 v14, s30, v14')
    a.e('v_mul_u32_u24 v11, 40, v11\nv_add_u32 v14, v14, v11\ns_mul_i32 s31, s53, 160')
    a.e('v_lshlrev_b32 v12, 2, v12\nv_mov_b32 v15, 1')
    a.e(f's_lshl_b32 s26, s4, 9\ns_lshl2_add_u32 s26, s5, s26\ns_add_u32 s26, s26, {FL}')
    a.e(f's_lshr_b32 s27, s52, 1\ns_lshl_b32 s27, s27, 9\ns_add_u32 s27, s27, {FL}')
    a.e(f's_mov_b32 s28, {SPINMAX}')
    a.e('s_waitcnt vmcnt(0)\ns_barrier'); ts(a, 3)
    a.e('s_cmp_lg_u32 s3, 0\ns_cbranch_scc1 L2_go')
    a.e('s_mov_b64 exec, 1')
    a.e('buffer_store_dword v15, v12, s[20:23], s26 offen sc1')
    a.e('s_mov_b64 exec, -1')
    a.e('L2_poll:')
    a.e('buffer_load_dword v17, v12, s[20:23], s27 offen sc1')
    a.e('s_sub_u32 s28, s28, 1\ns_cbranch_scc1 L2_go')
    a.e('s_waitcnt vmcnt(0)')
    a.e('v_cmp_ne_u32 vcc, 0, v17')
    a.e('s_nop 1\ns_cmp_eq_u64 vcc, -1\ns_cbranch_scc0 L2_poll')
    a.e('L2_go:')
    a.e('s_waitcnt vmcnt(0)\ns_barrier'); ts(a, 4)
    a.reset()
    AC3 = 24; SLOT = [104, 120, 156, 172, 188, 220, 236]; NS = len(SLOT)
    def loads(i):
        b = SLOT[i % NS]
        r = [f's_mov_b32 s27, {16384*i}']
        for k in range(4): r.append(f'buffer_load_dwordx4 {v(b+4*k,4)}, v{6+k}, s[44:47], s27 offen sc1')
        return r
    for i in range(NS):
        for x in loads(i): a.e(x)
    for i in range(14):
        b = SLOT[i % NS]
        m = []
        for k in range(4):
            for t in range(5):
                r = AC3 + 16 * t + 4 * k
                m.append(f'{MF} {v(r,4)}, {wreg(i,t)}, {v(b+4*k,4)}, {"0" if i==0 else v(r,4)}')
        f = loads(i - 1 + NS) if (i >= 1 and i - 1 + NS < 14) else []
        out = []
        for n, x in enumerate(m):
            out.append(x)
            if f and n >= 2 and n % 4 == 2:
                y = f.pop(0); out.append(y)
                if y.startswith('s_'): out.append(f.pop(0))
        out += f
        for x in out: a.e(x)
    ts(a, 5)
    ACC = AC3
    for k in range(1, 4):
        a.e(f's_xor_b32 s25, s3, {k}\ns_mul_i32 s25, s25, 15360\ns_add_u32 s25, s25, {5120*(k-1)}\nv_add_u32 v{5+k}, s25, v3')
    a.e('s_mul_i32 s25, s3, 15360\nv_add_u32 v5, s25, v3')
    RES = 104
    for t in range(5): a.e(f'ds_read_b64_tr_b16 {v(RES+2*t,2)}, v13 offset:{128*t}')
    for k in range(1, 4):
        for t in range(5): a.e(f'ds_write_b128 v{5+k}, {v(ACC+16*t+4*k,4)} offset:{1024*t}')
    a.e('s_mov_b32 s32, 0xffff0000')
    RF = 116
    for t in range(5):
        for h in range(2):
            a.e(f'v_lshlrev_b32 v{RF+4*t+2*h}, 16, v{RES+2*t+h}\nv_and_b32 v{RF+4*t+2*h+1}, s32, v{RES+2*t+h}')
        for h in range(2): a.e(f'v_pk_add_f32 {v(ACC+16*t+2*h,2)}, {v(ACC+16*t+2*h,2)}, {v(RF+4*t+2*h,2)}')
    a.e('s_waitcnt lgkmcnt(0)\ns_barrier')
    P = 156
    for t in range(5):
        for k in range(3): a.e(f'ds_read_b128 {v(P+12*t+4*k,4)}, v5 offset:{5120*k+1024*t}')
    O = 104
    for t in range(5):
        for h in range(2):
            a.e(f'v_pk_add_f32 {v(ACC+16*t+2*h,2)}, {v(ACC+16*t+2*h,2)}, {v(P+12*t+2*h,2)}')
            a.e(f'v_pk_add_f32 {v(P+12*t+4+2*h,2)}, {v(P+12*t+4+2*h,2)}, {v(P+12*t+8+2*h,2)}')
        for h in range(2):
            a.e(f'v_pk_add_f32 {v(ACC+16*t+2*h,2)}, {v(ACC+16*t+2*h,2)}, {v(P+12*t+4+2*h,2)}')
        for h in range(2): a.e(f'v_cvt_pk_bf16_f32 v{O+2*t+h}, v{ACC+16*t+2*h}, v{ACC+16*t+2*h+1}')
    a.e(f'buffer_store_dwordx4 {v(O,4)}, v14, s[48:51], s31 offen{OSC}')
    a.e(f'buffer_store_dwordx4 {v(O+4,4)}, v14, s[48:51], s31 offen offset:16{OSC}')
    a.e(f'buffer_store_dwordx2 {v(O+8,2)}, v14, s[48:51], s31 offen offset:32{OSC}')
    ts_end(a, 1, 6)
    a.e('L2_end:\ns_endpgm')
    return a.text(), 512

DQ = None
def diagk():
    a = Asm()
    a.e('s_cmp_ge_u32 s2, 1\ns_cbranch_scc1 L9_end')
    a.e('s_load_dwordx2 s[20:21], s[0:1], 96')
    a.e('s_mov_b32 s22, 0x10000000\ns_mov_b32 s23, 0x20000')
    a.e('s_waitcnt lgkmcnt(0)')
    a.e('s_and_b32 s21, s21, 0xffff')
    a.e('v_lshlrev_b32 v1, 6, v0')
    def red(q, dst, base):
        kid, idx, lo, hi, op = q
        n = (hi - lo) // 64
        for i in range(n):
            a.e(f's_mov_b32 s30, {TSB + kid * 131072 + (lo + 64 * i) * 64}')
            a.e(f'buffer_load_dwordx4 v[{4+8*i}:{7+8*i}], v1, s[20:23], s30 offen sc1\nbuffer_load_dwordx4 v[{8+8*i}:{11+8*i}], v1, s[20:23], s30 offen offset:16 sc1')
        for i in range(n):
            if idx < 0:
                for k in range(5, 12): a.e(f'v_max_u32 v{4+8*i}, v{4+8*i}, v{k+8*i}')
                r = 4 + 8 * i
            else: r = 4 + idx + 8 * i
            if base: a.e(f'v_subrev_u32 v{r}, {base}, v{r}')
            if i == 0: a.e(f'v_mov_b32 v2, v{r}')
            else: a.e(f'v_{ {"min":"min","max":"max","avg":"add"}[op] }_u32 v2, v2, v{r}')
        a.e('s_nop 4')
        a.e(f'v_readlane_b32 {dst}, v2, 0')
        for l in range(1, 64):
            a.e(f'v_readlane_b32 s31, v2, {l}')
            a.e(f's_{ {"min":"min","max":"max","avg":"add"}[op] }_u32 {dst}, {dst}, s31')
        if op == 'avg':
            a.e(f's_mul_i32 {dst}, {dst}, {round(65536 / (64 * n))}\ns_lshr_b32 {dst}, {dst}, 16')
    red((0, 0, 0, 1024, 'min'), 's40', None)
    red(DQ[0], 's41', 's40'); red(DQ[1], 's42', 's40')
    a.e(f's_sub_u32 s42, s42, s41\ns_mul_i32 s42, s42, {DQ[2]}\ns_min_u32 s42, s42, 30000')
    a.e('s_memrealtime s[44:45]\ns_waitcnt lgkmcnt(0)')
    a.e('L9_spin:')
    a.e('s_memrealtime s[46:47]\ns_waitcnt lgkmcnt(0)')
    a.e('s_sub_u32 s46, s46, s44\ns_cmp_lt_u32 s46, s42\ns_cbranch_scc1 L9_spin')
    a.e('L9_end:\ns_endpgm')
    return a.text(), 256

def build(extra_empty=0):
    ks = [('conv_kernel', lambda: K1P.k1p(sys.modules[__name__]), 256, 81920 + 40960 + 1024),
          (NAME + '_kernel', k23, 256, K23_LDS)]
    if DQ: ks.append(('diag_kernel', diagk, 1, 0))
    hdr = ['; generated by dev/gen3.py: 2-kernel pipeline (LN1 + shift conv + long conv + weight packing; LN2 + gate/up GEMM + down GEMM)']
    for n, f, g, l in ks: hdr.append(f'; @launch kernel={n} grid=({g},1,1) block=({64 if g == 1 else 256},1,1) lds={l}')
    for i in range(extra_empty): hdr.append(f'; @launch kernel=empty_kernel grid=(256,1,1) block=(256,1,1) lds=0')
    out = '\n'.join(hdr) + '\n.amdgcn_target "amdgcn-amd-amdhsa--gfx950"\n.text\n'
    desc = '.section .rodata,"a"\n'
    if extra_empty: ks = ks + [('empty_kernel', lambda: ('  s_endpgm\n', 64), 256, 0)]
    for n, f, g, l in ks:
        body, nv = f()
        out += f'.globl {n}\n.p2align 8\n.type {n},@function\n{n}:\n{body}'
        desc += f'''.p2align 6
.amdhsa_kernel {n}
  .amdhsa_next_free_vgpr {nv}
  .amdhsa_next_free_sgpr 102
  .amdhsa_accum_offset {min(nv,256)}
  .amdhsa_group_segment_fixed_size 0
  .amdhsa_kernarg_size 104
  .amdhsa_user_sgpr_count 2
  .amdhsa_user_sgpr_kernarg_segment_ptr 1
  .amdhsa_system_sgpr_workgroup_id_x 1
  .amdhsa_float_denorm_mode_32 3
.end_amdhsa_kernel
'''
    return out + 'Lcode_end:\n' + desc

if __name__ == '__main__':
    ee = int(sys.argv[2]) if len(sys.argv) > 2 else 0
    if len(sys.argv) > 3 and sys.argv[3] == '1': TSON = True
    for kv in sys.argv[4:]:
        k_, v_ = kv.split('=', 1)
        globals()[k_] = eval(v_)
    open(sys.argv[1], 'w').write(build(ee))
```

```python
from asmlib import *

def k1p(G):
    MF = G.MF; ts = G.ts; ts_end = G.ts_end; srd_consts = G.srd_consts; srd_fix = G.srd_fix
    HSC = G.HSC1
    PSC = G.PSC1
    a = Asm()
    FU = G.FUSE
    if FU: HSC = PSC = ' sc1'
    def rend(n, lab):
        ts_end(a, 0, n)
        if FU: a.e(f's_mov_b64 exec, -1\ns_branch {lab}')
        else: a.e('s_endpgm')
    NT = lambda c: ' nt' if c in G.NTS else ''
    XB = 81920
    a.e(f's_cmp_ge_u32 s2, 256\ns_cbranch_scc1 L1_end'); ts(a, 0)
    a.e('s_load_dwordx2 s[4:5], s[0:1], 0')
    a.e('s_load_dwordx2 s[20:21], s[0:1], 96')
    a.e('s_load_dwordx2 s[16:17], s[0:1], 88')
    a.e('s_cmp_lt_u32 s2, 224\ns_cbranch_scc1 L1_npf')
    G.code_pf(a, 'conv_kernel')
    a.e('L1_npf:')
    a.e('v_lshrrev_b32 v1, 6, v0\nv_and_b32 v2, 63, v0')
    a.e('s_and_b32 s60, s2, 7\ns_lshr_b32 s61, s2, 3')
    a.e('v_readfirstlane_b32 s3, v1')
    srd_consts(a, 20, G.WSEND); srd_consts(a, 16, 256)
    a.e('s_movk_i32 s62, 1280')
    a.e('s_lshr_b32 s28, s3, 1\ns_lshl3_add_u32 s28, s28, 8')
    a.e('s_load_dwordx2 s[24:25], s[0:1], s28')
    a.e('s_add_u32 s28, s61, 24\ns_and_b32 s28, s28, 31\ns_lshl_b32 s28, s28, 6\nv_add_u32 v3, s28, v2\nv_mul_u32_u24 v3, s62, v3')
    a.e('s_mul_i32 s28, s60, 160\ns_and_b32 s29, s3, 1\ns_mul_i32 s29, s29, 156\ns_add_u32 s28, s28, s29\nv_add_u32 v3, s28, v3')
    srd_consts(a, 24, G.NB_X)
    def kvpf():
        srd_fix(a, 24)
        for i, m in enumerate(G.PFM): a.e(f'buffer_load_dword v{255-2*i}, v3, s[24:27], 0 offen{m}')
    a.e('s_cmp_ge_u32 s61, 28\ns_cbranch_scc1 L1_wd')
    a.e('s_cmp_ge_u32 s61, 8\ns_cbranch_scc1 L1_c')
    a.e('s_and_b32 s63, s3, 1\ns_lshr_b32 s64, s3, 1')
    a.e('s_lshl3_add_u32 s29, s63, 56')
    a.e('s_load_dwordx2 s[8:9], s[0:1], s29')
    srd_consts(a, 4, G.NB_X); srd_consts(a, 8, G.NB_W)
    a.e('v_and_b32 v4, 7, v2\nv_lshrrev_b32 v5, 3, v2')
    a.e('s_lshl_b32 s30, s2, 5\nv_lshl_add_u32 v6, v5, 2, s30\nv_mul_u32_u24 v6, s62, v6')
    a.e('v_xor_b32 v17, v4, v5\nv_lshl_add_u32 v6, v17, 4, v6')
    a.e('v_and_b32 v7, 28, v2\nv_lshrrev_b32 v18, 5, v2\nv_add3_u32 v7, v7, v18, s30\nv_mul_u32_u24 v7, s62, v7')
    a.e('v_and_b32 v18, 3, v2\nv_lshl_add_u32 v7, v18, 4, v7')
    a.e(f's_mul_i32 s50, s3, 10240\ns_add_u32 s50, s50, {XB}')
    a.e('s_mul_i32 s30, s3, 320\ns_lshl_b32 s31, s63, 6\ns_add_u32 s31, s31, s30')
    a.e('s_xor_b32 s32, s63, 1\ns_lshl_b32 s32, s32, 8\ns_add_u32 s32, s32, s30')
    a.e('s_waitcnt lgkmcnt(0)')
    srd_fix(a, 4)
    X = 24
    xt = []
    for r in range(4):
        for st in range(2):
            a.e(f's_add_u32 m0, s50, {2048*r+1024*st-1280*r-128*st}' if 2048*r+1024*st else 's_mov_b32 m0, s50')
            t_ = a.e(f'buffer_load_dwordx4 v6, s[4:7], s31 offen offset:{1280*r+128*st}{NT("x")} lds')
        if r % 2 == 0:
            a.e(f's_add_u32 m0, s50, {8192+512*r-1280*r}')
            t_ = a.e(f'buffer_load_dwordx4 v7, s[4:7], s32 offen offset:{1280*r}{NT("x")} lds')
        xt.append(t_)
    kvpf()
    a.e('s_lshr_b32 s65, s60, 1\ns_and_b32 s66, s61, 3\ns_lshl2_add_u32 s65, s65, s66')
    a.e('s_and_b32 s66, s60, 1\ns_lshr_b32 s67, s61, 2\ns_lshl1_add_u32 s66, s66, s67')
    a.e('s_and_b32 s67, s65, 1')
    a.e('v_lshrrev_b32 v8, 4, v2\nv_and_b32 v9, 15, v2\nv_lshlrev_b32 v10, 1, v8\nv_xor_b32 v9, v9, v10')
    a.e('s_movk_i32 s33, 3456\nv_mul_u32_u24 v8, s33, v8\nv_lshl_add_u32 v8, v9, 4, v8')
    a.e('v_xor_b32 v10, 8, v9\nv_subrev_u32 v11, v9, v10\nv_lshl_add_u32 v11, v11, 4, v8')
    a.e('s_cmp_eq_u32 s65, 15\ns_cselect_b32 s34, 8, 16')
    a.e('v_mov_b32 v12, 0x7ff00000')
    a.e('v_cmp_le_u32 vcc, s34, v9\nv_cndmask_b32 v8, v8, v12, vcc')
    a.e('v_cmp_le_u32 vcc, s34, v10\nv_cndmask_b32 v9, v11, v12, vcc')
    a.e('s_lshl1_add_u32 s34, s66, s64\ns_mul_i32 s34, s34, 276480')
    a.e('s_lshr_b32 s35, s65, 1\ns_mul_i32 s35, s35, 448\ns_add_u32 s34, s34, s35\ns_mul_i32 s35, s67, 192\ns_add_u32 s34, s34, s35')
    a.e('s_mul_i32 s35, s63, 40960\ns_mul_i32 s36, s64, 20480\ns_add_u32 s36, s36, s35')
    for b in (8, 16, 20): srd_fix(a, b)
    if FU:
        a.e(f's_lshl_b32 s37, s2, 8\ns_add_u32 s37, s37, {G.FL}\nv_mov_b32 v12, 0')
        a.e('s_mov_b64 exec, 0xffff\nv_lshrrev_b32 v13, 2, v0\nv_and_b32 v13, 0x30, v13\nv_add_lshl_u32 v13, v13, v2, 2')
        a.e('buffer_store_dword v12, v13, s[20:23], s37 offen sc1\ns_mov_b64 exec, -1')
    def wdma(lo, hi):
        for gm in range(lo, hi):
            if 'W' in G.DIAG: continue
            a.e(f's_add_u32 m0, s36, {1024*gm}')
            a.e(f'buffer_load_dwordx4 v{8+(gm&1)}, s[8:11], s34 offen{NT("w")} lds')
            if gm < 19: a.e('s_add_u32 s34, s34, 13824')
    wdma(0, G.WN0)
    S = 64
    a.e('v_mov_b32 v12, 0x3f803f80')
    for i in range(8): a.e(f'v_mov_b32 v{S+i}, 0')
    XL = XB + 40960
    a.e(f'v_lshlrev_b32 v13, 5, v4\nv_add_u32 v13, {XL}, v13\ns_lshl_b32 s37, s3, 8\nv_add_u32 v14, s37, v13')
    a.e('v_lshlrev_b32 v15, 4, v4\nv_lshl_add_u32 v16, v5, 9, v15\nv_lshl_add_u32 v15, v5, 10, v15')
    a.e(f's_mul_i32 s37, s2, {G.XSTR}\ns_add_u32 s37, s37, {G.XA}')
    a.e('s_lshl_b32 s38, s31, 6\ns_add_u32 s38, s38, s37\ns_add_u32 s39, s38, 8192\ns_lshl_b32 s40, s32, 6\ns_add_u32 s40, s40, s37')
    a.e('s_mov_b32 s41, 0x05040100\ns_mov_b32 s42, 0x07060302\ns_mov_b32 s43, 0xffff0000')
    a.e('v_lshlrev_b32 v17, 4, v17\nv_lshl_add_u32 v17, v4, 7, v17\nv_add_u32 v17, s50, v17')
    a.e('v_lshlrev_b32 v18, 3, v5\nv_lshl_add_u32 v18, v4, 6, v18\nv_add_u32 v18, s50, v18')
    for r in range(4):
        a.waitvm(xt[r])
        for st in range(2): a.e(f'ds_read_b128 {v(X+10*r+4*st,4)}, v17 offset:{2048*r+1024*st}')
        a.e(f'ds_read_b64 {v(X+10*r+8,2)}, v18 offset:{8192+512*r}')
    for r in range(4):
        for d in range(10):
            a.e(f'v_dot2c_f32_bf16 v{S+2*r}, v12, v{X+10*r+d}\nv_dot2c_f32_bf16 v{S+2*r+1}, v{X+10*r+d}, v{X+10*r+d}')
    ts(a, 1)
    for e in range(8): a.e(f'v_add_f32_dpp v{S+e}, v{S+e}, v{S+e} row_ror:8 row_mask:0xf bank_mask:0xf')
    for sw in ('v_permlane16_swap_b32', 'v_permlane32_swap_b32'):
        for e in range(8): a.e(f'v_mov_b32 v{S+8+e}, v{S+e}')
        for e in range(8): a.e(f'{sw} v{S+e}, v{S+8+e}')
        for e in range(8): a.e(f'v_add_f32 v{S+e}, v{S+e}, v{S+8+e}')
    a.e('s_mov_b64 exec, 0xff')
    a.e(f'ds_write_b128 v14, {v(S,4)}\nds_write_b128 v14, {v(S+4,4)} offset:16')
    a.e('s_mov_b64 exec, -1')
    a.e('s_waitcnt lgkmcnt(0)\ns_barrier')
    for w in range(4):
        for h in range(2): a.e(f'ds_read_b128 {v(S+8*w+4*h,4)}, v13 offset:{256*w+16*h}')
    U = 100
    for r in range(4):
        for d in range(10):
            a.e(f'v_lshlrev_b32 v{U+20*r+2*d}, 16, v{X+10*r+d}\nv_and_b32 v{U+20*r+2*d+1}, s43, v{X+10*r+d}')
    for h in range(4):
        a.e(f'v_pk_add_f32 {v(S+2*h,2)}, {v(S+2*h,2)}, {v(S+8+2*h,2)}')
        a.e(f'v_pk_add_f32 {v(S+16+2*h,2)}, {v(S+16+2*h,2)}, {v(S+24+2*h,2)}')
    for h in range(4): a.e(f'v_pk_add_f32 {v(S+2*h,2)}, {v(S+2*h,2)}, {v(S+16+2*h,2)}')
    for r in range(4):
        t = S + 2 * r
        a.e(f'v_mul_f32 v{t}, 0xbacccccd, v{t}\nv_mul_f32 v{t+1}, 0x3acccccd, v{t+1}')
    for r in range(4):
        t = S + 2 * r
        a.e(f'v_fma_f32 v{t+1}, -v{t}, v{t}, v{t+1}\nv_max_f32 v{t+1}, 0, v{t+1}\nv_add_f32 v{t+1}, 0x3727c5ac, v{t+1}')
    for r in range(4): a.e(f'v_rsq_f32 v{S+2*r+1}, v{S+2*r+1}')
    for r in range(4): a.e(f'v_mul_f32 v{S+2*r}, v{S+2*r}, v{S+2*r+1}')
    O = 180
    for d in range(10):
        for r in range(4):
            u = U + 20 * r + 2 * d
            a.e(f'v_pk_fma_f32 {v(u,2)}, {v(u,2)}, {v(S+2*r,2)}, {v(S+2*r,2)} op_sel:[0,1,0] op_sel_hi:[1,1,0]')
        for h in range(2):
            o = O + 8 * (d % 8) + 4 * h
            a.e(f'v_perm_b32 v{o}, v{X+10+d}, v{X+d}, s{41+h}\nv_perm_b32 v{o+1}, v{X+30+d}, v{X+20+d}, s{41+h}')
            a.e(f'v_cvt_pk_bf16_f32 v{o+2}, v{U+2*d+h}, v{U+20+2*d+h}\nv_cvt_pk_bf16_f32 v{o+3}, v{U+40+2*d+h}, v{U+60+2*d+h}')
            st = d >> 2; e = 2 * (d & 3) + h
            a.e(f'buffer_store_dwordx4 {v(o,4)}, v{16 if st==2 else 15}, s[20:23], s{38+st} offen offset:{128*e} sc1')
    a.e('v_and_b32 v4, 3, v2\nv_lshrrev_b32 v5, 2, v2')
    a.e('v_and_b32 v6, 7, v5\nv_lshlrev_b32 v6, 5, v6')
    a.e('v_lshlrev_b32 v5, 8, v5')
    a.e('s_add_u32 s37, s67, s64\ns_lshl_b32 s37, s37, 6')
    a.e('v_lshl_add_u32 v7, v4, 3, s37\nv_xor_b32 v20, v7, v6\nv_add3_u32 v20, v20, v5, s35')
    a.e('v_xor_b32 v21, 32, v20')
    a.e('s_lshl_b32 s37, s67, 6\ns_lshl4_add_u32 s37, s64, s37\ns_add_u32 s37, s37, 128')
    a.e('v_lshrrev_b32 v10, 1, v4\nv_and_b32 v11, 1, v4')
    a.e('v_lshl_add_u32 v7, v10, 5, s37\nv_lshl_add_u32 v7, v11, 3, v7\nv_xor_b32 v22, v7, v6\nv_add3_u32 v22, v22, v5, s35')
    a.e('s_cmp_eq_u32 s67, 1\ns_cselect_b32 s37, 16, 192\ns_lshl3_add_u32 s37, s64, s37')
    a.e('v_lshl_add_u32 v7, v11, 5, s37\nv_xor_b32 v23, v7, v6\nv_add_u32 v23, v23, v5\nv_mul_u32_u24 v10, 40960, v10\nv_add_u32 v23, v23, v10')
    a.e('v_lshlrev_b32 v3, 4, v2\nv_lshrrev_b32 v4, 4, v2\nv_lshlrev_b32 v4, 4, v4')
    a.e('v_mov_b32 v5, 1\nv_mov_b32 v6, 0\ns_lshl_b32 s44, s2, 2')
    for i in range(4): a.e(f'v_mov_b32 v{12+i}, 0x3f803f80')
    a.e(f's_mul_i32 s37, s65, 286720\ns_mul_i32 s45, s66, 71680\ns_add_u32 s37, s37, s45\ns_add_u32 s37, s37, {G.W1P}')
    a.e('s_mul_i32 s45, s64, 7\ns_mul_i32 s46, s63, 3\ns_add_u32 s45, s45, s46')
    a.e('s_lshl_b32 s46, s45, 10\ns_add_u32 s37, s37, s46')
    a.e(f's_mul_i32 s46, s66, 14336\ns_mul_i32 s47, s65, 896\ns_add_u32 s46, s46, s47\ns_lshl_b32 s47, s45, 6\ns_add_u32 s46, s46, s47\ns_add_u32 s46, s46, {G.CS}')
    a.e('s_waitcnt vmcnt(0)\ns_barrier'); ts(a, 2)
    a.e('s_cmp_lg_u32 s3, 0\ns_cbranch_scc1 L1_x2')
    a.e('s_mov_b64 exec, 1')
    a.e('buffer_store_dword v5, v6, s[16:19], s44 offen sc1')
    a.e('s_mov_b64 exec, -1')
    a.e('L1_x2:')
    if G.WN0 < 20:
        wdma(G.WN0, 20)
        a.e('s_waitcnt vmcnt(0)\ns_barrier')
    F = 24; CA = 120
    for ks in range(5):
        for t in range(3):
            for hh in range(2):
                a.e(f'ds_read_b64_tr_b16 {v(F+12*ks+4*t+2*hh,2)}, v{20+t} offset:{8192*ks+4096*hh}')
    for ks in range(5):
        for hh in range(2): a.e(f'ds_read_b64_tr_b16 {v(F+60+4*ks+2*hh,2)}, v23 offset:{8192*ks+4096*hh}')
    a.e('s_mov_b32 s47, s37')
    for ks in range(5):
        for t in range(3):
            f = v(F + 12 * ks + 4 * t, 4)
            a.e(f'buffer_store_dwordx4 {f}, v3, s[20:23], s47 offen offset:{1024*t}{PSC}')
            a.e(f'{MF} {v(CA+4*t,4)}, {f}, v[12:15], {v(CA+4*t,4) if ks else 0}')
        if ks < 4: a.e('s_add_u32 s47, s47, 14336')
    a.e('s_mov_b32 s48, 0x00010001\ns_mov_b32 s49, s48')
    a.e('s_mov_b64 exec, s[48:49]')
    for t in range(3): a.e(f'buffer_store_dwordx4 {v(CA+4*t,4)}, v4, s[20:23], s46 offen offset:{64*t}{PSC}')
    a.e('s_mov_b64 exec, -1')
    a.e('s_waitcnt lgkmcnt(0)')
    a.e('s_cmp_lg_u32 s63, 0\ns_cbranch_scc1 L1_x3')
    a.e('s_add_u32 s47, s37, 6144')
    for ks in range(5):
        f = v(F + 60 + 4 * ks, 4)
        a.e(f'buffer_store_dwordx4 {f}, v3, s[20:23], s47 offen{PSC}')
        a.e(f'{MF} {v(CA+12,4)}, {f}, v[12:15], {v(CA+12,4) if ks else 0}')
        if ks < 4: a.e('s_add_u32 s47, s47, 14336')
    a.e('s_mov_b64 exec, s[48:49]')
    a.e(f'buffer_store_dwordx4 {v(CA+12,4)}, v4, s[20:23], s46 offen offset:384{PSC}')
    a.e('L1_x3:')
    rend(3, 'L2_join1')
    a.reset()
    a.e('L1_c:')
    a.e('s_load_dwordx4 s[8:11], s[0:1], 8')
    a.e('s_load_dwordx4 s[12:15], s[0:1], 24')
    a.e('s_load_dwordx2 s[30:31], s[0:1], 40')
    a.e('s_mul_i32 s63, s60, 20\ns_add_u32 s63, s63, s61\ns_sub_u32 s63, s63, 8')
    a.e('s_lshl2_add_u32 s64, s63, s3')
    a.e('s_mul_i32 s65, s3, 12928')
    a.e('s_lshl_b32 s66, s64, 12\ns_lshl_b32 s67, s63, 5')
    a.e('s_lshl_b32 s68, s64, 1\ns_and_b32 s68, s68, -4')
    a.e('v_lshlrev_b32 v4, 4, v2')
    a.e('v_subrev_u32 v5, 4, v4\nv_add_u32 v6, 1020, v4')
    a.e('v_mul_u32_u24 v7, 2560, v0\ns_lshl_b32 s69, s63, 3\nv_add_u32 v7, s69, v7')
    a.e('v_min_u32 v8, 11, v2\nv_mul_u32_u24 v9, 43, v8\nv_lshrrev_b32 v9, 7, v9')
    a.e('v_mul_u32_u24 v10, 509, v9\nv_add_u32 v8, v8, v10')
    a.e('s_lshl_b32 s70, s3, 7\nv_add_u32 v8, s70, v8\nv_mul_u32_u24 v8, s62, v8')
    a.e('s_sub_u32 s69, s69, 3840\nv_add_u32 v8, s69, v8')
    a.e('s_waitcnt lgkmcnt(0)')
    kvpf()
    a.e('s_load_dwordx8 s[36:43], s[12:13], s67')
    a.e('s_load_dword s29, s[30:31], s68')
    a.e('s_mov_b64 s[4:5], s[8:9]\ns_mov_b64 s[8:9], s[10:11]')
    a.e('s_add_u32 s12, s14, s66\ns_addc_u32 s13, s15, 0')
    srd_consts(a, 4, G.NB_X); srd_consts(a, 8, G.NB_X); srd_consts(a, 12, 4096)
    for b in (4, 8, 12, 16, 20): srd_fix(a, b)
    ACC = 24; BF = 56; KR = 120; HL = 152; WK = 154; XA = 200; ET = 232
    FT = 56; PV = 72; OT = 76; DG = 20
    for c in range(4): a.e(f'buffer_load_dwordx4 {v(FT+4*c,4)}, v4, s[12:15], 0 offen offset:{1024*c}{NT("f")}')
    a.e(f'buffer_load_dword v{PV}, v5, s[12:15], 0 offen{NT("f")}')
    for c in range(1, 4): a.e(f'buffer_load_dword v{PV+c}, v6, s[12:15], 0 offen offset:{1024*(c-1)}{NT("f")}')
    a.e('s_add_u32 m0, s65, 32')
    for c in range(4): dma_last = a.e(f'buffer_load_dwordx4 v4, s[12:15], 0 offen offset:{1024*c}{NT("f")} lds')
    a.e(f'buffer_load_dwordx2 {v(HL,2)}, v8, s[4:7], 0 offen{NT("g")}')
    for c in range(1, 4): a.e(f's_mov_b32 s{70+c}, {655360*c}')
    def gath(c):
        so = f's{70+c}' if c else '0'
        return [f'buffer_load_dwordx2 {v(KR+8*c,2)}, v7, s[4:7], {so} offen{NT("g")}',
                f'buffer_load_dwordx2 {v(KR+8*c+2,2)}, v7, s[4:7], {so} offen offset:1280{NT("g")}',
                f'buffer_load_dwordx2 {v(KR+8*c+4,2)}, v7, s[8:11], {so} offen{NT("g")}',
                f'buffer_load_dwordx2 {v(KR+8*c+6,2)}, v7, s[8:11], {so} offen offset:1280{NT("g")}']
    gl = [gath(c) for c in range(4)]
    if G.GBAR: a.e('s_barrier')
    for x in gl[0]: a.e(x)
    a.e('v_and_b32 v5, 15, v2\nv_lshrrev_b32 v6, 4, v2')
    a.e('v_add_u32 v10, 12416, v4')
    a.e('v_and_b32 v11, 1, v2\nv_lshlrev_b32 v11, 4, v11')
    a.e('v_add_u32 v12, 4160, v11')
    a.e('v_cmp_gt_u32 vcc, 32, v2\nv_cndmask_b32 v11, v12, v11, vcc')
    a.e('v_cmp_gt_u32 vcc, 30, v2\nv_cndmask_b32 v10, v11, v10, vcc')
    a.e('v_add_u32 v10, s65, v10')
    for i in range(4): a.e(f'v_mov_b32 v{OT+i}, 0')
    a.e(f'ds_write_b128 v10, {v(OT,4)}')
    a.e('v_and_b32 v11, 1, v5')
    a.e('v_cmp_eq_u32 vcc, 1, v11')
    a.e('v_mov_b32 v12, 4164\nv_mov_b32 v13, 2\nv_cndmask_b32 v12, v12, v13, vcc')
    a.e('v_lshl_add_u32 v12, v5, 1, v12\nv_lshl_add_u32 v12, v6, 4, v12\nv_add_u32 v12, s65, v12')
    a.e('v_add_u32 v13, 1024, v12\nv_add_u32 v14, 2048, v12\nv_add_u32 v15, 3072, v12')
    a.e('v_lshlrev_b32 v11, 5, v5\nv_sub_u32 v11, 8800, v11\nv_lshl_add_u32 v11, v6, 4, v11\nv_add_u32 v11, s65, v11')
    a.e('v_add_u32 v10, s65, v4')
    a.e('v_lshlrev_b32 v9, 2, v0\nv_sub_u32 v9, 9340, v9')
    a.e(f'v_lshrrev_b32 v16, 1, v5\ns_mov_b32 s32, {G.XSTR}\nv_mul_lo_u32 v16, v16, s32')
    a.e('v_and_b32 v17, 1, v5\nv_lshl_add_u32 v17, v17, 2, v6\nv_lshl_add_u32 v16, v17, 4, v16')
    a.e(f's_lshl_b32 s33, s64, 7\ns_add_u32 s33, s33, {G.XA}')
    a.e('v_lshlrev_b32 v18, 2, v2')
    a.e('v_and_b32 v17, 1, v6\nv_lshlrev_b32 v17, 1, v17\nv_lshrrev_b32 v19, 3, v5\nv_add_u32 v17, v17, v19')
    a.e('s_mov_b32 s34, 163840\nv_mul_lo_u32 v17, v17, s34')
    a.e('s_and_b32 s34, s64, 7\nv_and_b32 v19, 7, v5\nv_xor_b32 v19, s34, v19\nv_lshl_add_u32 v17, v19, 5, v17')
    a.e('v_lshrrev_b32 v19, 1, v6\nv_lshl_add_u32 v17, v19, 4, v17')
    a.e(f's_lshl_b32 s34, s64, 8\ns_add_u32 s34, s34, {G.HT}\ns_mov_b32 s35, 0xffff0000')
    for x in gl[1][:G.G1PRE]: a.e(x)
    for ch in range(4):
        for h in range(2):
            a.e(f's_lshl_b32 s{44+4*ch+2*h}, s{36+2*ch+h}, 16\ns_and_b32 s{45+4*ch+2*h}, s{36+2*ch+h}, s35')
    a.e('v_lshlrev_b32 v3, 3, v6\nv_add_u32 v3, v3, v5\nv_sub_u32 v3, 15, v3')
    a.e('s_and_b32 s28, s64, 1\ns_lshl_b32 s28, s28, 4\ns_lshr_b32 s29, s29, s28\ns_and_b32 s29, s29, 0xffff')
    a.e('v_and_b32 v19, 1, v3\nv_lshlrev_b32 v19, 4, v19\nv_lshlrev_b32 v19, v19, s29')
    a.e('v_lshrrev_b32 v3, 1, v3')
    for i in range(4):
        a.e(f'v_cmp_eq_u32 vcc, {i}, v3\nv_cndmask_b32 v{DG+i}, 0, v19, vcc')
    for c in range(4):
        o = OT + 4 + 4 * c
        a.e(f'v_alignbit_b32 v{o}, v{FT+4*c}, v{PV+c}, 16')
        for i in range(1, 4): a.e(f'v_alignbit_b32 v{o+i}, v{FT+4*c+i}, v{FT+4*c+i-1}, 16')
        a.e(f'ds_write_b128 v10, {v(o,4)} offset:{4160+32+1024*c}')
    a.waitvm(dma_last); ts(a, 1)
    AR = lambda p, q: 32 * q + 4 * p
    rest1 = gl[1][G.G1PRE:]
    def areads(q):
        r_ = []
        for p in range(8):
            o = 128 * (p & 1) + 16 * q; r = AR(p, q)
            r_.append(f'ds_read2_b32 a[{r}:{r+1}], v{12+(p>>1)} offset0:{o} offset1:{o+1}')
            r_.append(f'ds_read2_b32 a[{r+2}:{r+3}], v{12+(p>>1)} offset0:{o+2} offset1:{o+3}')
        return r_
    for q in range(G.NPRE):
        for x in areads(q): a.e(x)
        if rest1: a.e(rest1.pop(0))
    for x in rest1: a.e(x)
    def valu(c):
        K0 = KR + 8 * c; K1 = K0 + 2; V0 = K0 + 4; V1 = K0 + 6
        P0 = WK; P1 = WK + 2; Q1 = WK + 4; U = WK + 6; UV = U + 20; AC = UV + 8; O = AC + 8
        r = []
        for dst, rr in ((Q1, 0), (P0, 1), (P1, 2)):
            for h in range(2):
                sh = 3 * c + rr
                if sh: r.append(f'v_mov_b32_dpp v{dst+h}, v{HL+h} row_shl:{sh} row_mask:0xf bank_mask:0xf')
                else: r.append(f'v_mov_b32 v{dst+h}, v{HL+h}')
        for h in range(2):
            r.append(f'v_mov_b32_dpp v{P1+h}, v{K1+h} wave_shr:1 row_mask:0xf bank_mask:0xf')
            r.append(f'v_mov_b32_dpp v{P0+h}, v{K0+h} wave_shr:1 row_mask:0xf bank_mask:0xf')
        def unp(dst, src):
            for h in range(2):
                r.append(f'v_lshlrev_b32 v{dst+2*h}, 16, v{src+h}')
                r.append(f'v_and_b32 v{dst+2*h+1}, s35, v{src+h}')
        unp(U + 16, K1); unp(U + 12, K0)
        for h in range(2):
            r.append(f'v_mov_b32_dpp v{Q1+h}, v{P1+h} wave_shr:1 row_mask:0xf bank_mask:0xf')
        unp(U + 8, P1); unp(U + 4, P0); unp(U, Q1)
        for j in range(4):
            for o in (1, 0):
                for ch in range(4):
                    src = U + 4 * (3 + o - j) + ch
                    if j == 0: r.append(f'v_mul_f32 v{AC+4*o+ch}, s{44+4*ch}, v{src}')
                    else: r.append(f'v_fmac_f32 v{AC+4*o+ch}, s{44+4*ch+j}, v{src}')
        unp(UV, V0); unp(UV + 4, V1)
        for i in range(8): r.append(f'v_mul_f32 v{AC+i}, v{AC+i}, v{UV+i}')
        for ch in range(4): r.append(f'v_cvt_pk_bf16_f32 v{O+ch}, v{AC+4+ch}, v{AC+ch}')
        for ch in range(4): r.append(f'ds_write_b32 v9, v{O+ch} offset:{12928*ch+1024*(3-c)}')
        return r
    def breads(c):
        r = []
        for q in range(8):
            for tt in range(2):
                t = 2 * c + tt
                r.append(f'ds_read_b128 {v(BF+8*q+4*tt,4)}, v11 offset:{512*(7-t)+64*q}')
        return r
    started = set()
    def mf(acc, A, B):
        c = v(ACC + 4 * acc, 4) if acc in started else '0'
        started.add(acc)
        return f'{MF} {v(ACC+4*acc,4)}, {A}, {B}, {c}'
    def mfmas(c):
        m = []
        for q in range(8):
            for tt in range(2):
                t = 2 * c + tt; B = v(BF + 8 * q + 4 * tt, 4)
                if q == 0: m.append(mf(t, v(DG, 4), B))
                for p in range(8 - t):
                    m.append(mf(t + p, f'a[{AR(p,q)}:{AR(p,q)+3}]', B))
        return m
    def epi(pr):
        r = []
        for b in range(2):
            jt = 2 * pr + b; t = ET + 8 * b; x = XA + 4 * jt
            for h in range(4):
                r.append(f'v_lshlrev_b32 v{t+2*h}, 16, v{x+h}')
                r.append(f'v_and_b32 v{t+2*h+1}, s35, v{x+h}')
            for k in range(4): r.append(f'v_fmac_f32 v{t+k}, v{t+4+k}, v{ACC+4*jt+k}')
        o = ET + 16 + 4 * (pr & 1)
        for b in range(2):
            t = ET + 8 * b
            r.append(f'v_cvt_pk_bf16_f32 v{o+2*b}, v{t}, v{t+1}')
            r.append(f'v_cvt_pk_bf16_f32 v{o+2*b+1}, v{t+2}, v{t+3}')
        r.append(f'v_permlane16_swap_b32 v{o}, v{o+2}')
        r.append(f'v_permlane16_swap_b32 v{o+1}, v{o+3}')
        r.append(f'buffer_store_dwordx4 {v(o,4)}, v17, s[20:23], s34 offen{HSC}')
        if pr < 3: r.append('s_add_u32 s34, s34, 655360')
        return r
    def spread(m, items):
        out = []; items = sorted(items, key=lambda z: z[0]); k = 0
        for n, x in enumerate(m):
            out.append(x)
            while k < len(items) and items[k][0] <= n: out += items[k][1]; k += 1
        while k < len(items): out += items[k][1]; k += 1
        return out
    def emit(lst):
        for x in lst:
            if callable(x): x()
            else: a.e(x)
    emit(valu(0))
    a.e('s_waitcnt lgkmcnt(0)\ns_barrier'); ts(a, 2)
    polltok = []
    def poll_issue(): polltok.append(a.e('buffer_load_dword v19, v18, s[16:19], 0 offen sc1'))
    def poll_check():
        a.e('s_cmp_lg_u32 s3, 0\ns_cbranch_scc1 L1_back')
        a.e('v_cmp_ne_u32 vcc, 0, v19')
        a.e('s_nop 1\ns_cmp_eq_u64 vcc, -1\ns_cbranch_scc0 L1_slow')
        a.e('L1_back:')
    xal = []; mbase = 0
    for jt in range(8):
        xal.append([f'buffer_load_dwordx4 {v(XA+4*jt,4)}, v16, s[20:23], s33 offen sc1'] + ([f's_add_u32 s33, s33, {8*G.XSTR}'] if jt < 7 else []))
    for c in range(4):
        br = breads(c); m = mfmas(c); items = []
        if c == G.POLLC + 1: emit(sum(xal, []))
        emit(br[:4])
        if c == 0:
            for q in range(8):
                lst = br[2*q+4:2*q+6] + (areads(q + G.NPRE) if q + G.NPRE < 8 else [])
                for i, x in enumerate(lst): items.append((15 * q + i * 15 // max(len(lst), 15), [x]))
        else:
            for i, x in enumerate(br[4:]): items.append((i, [x]))
        for i, x in enumerate(gl[2] + gl[3]):
            pos = G.LD0 + G.LDS_ * i - mbase
            if 0 <= pos < len(m): items.append((pos, [x]))
        mbase += len(m)
        if c == G.POLLC: items.append((max(0, len(m) - G.POLLD), [poll_issue]))
        if c < 3:
            va = valu(c + 1)
            st = len(m) - (len(va) + 1) // 2 - 1
            st = max(st, 12)
            for i in range(0, len(va), 2): items.append((st + i // 2, va[i:i + 2]))
        if c == 3:
            ep = epi(0) + epi(1) + epi(2)
            e0 = 12 if G.POLLC < 2 else 26
            for i in range(0, len(ep), 2): items.append((e0 + i // 2, ep[i:i + 2]))
        emit(spread(m, items))
        if c == G.POLLC: poll_check()
        if c < 3: a.e('s_waitcnt lgkmcnt(0)\ns_barrier')
        if c < 3: ts(a, 3 + c)
    emit(epi(3))
    rend(6, 'L2_join0')
    a.reset()
    a.e(f'L1_slow:\ns_mov_b32 s28, {G.SPINMAX}')
    a.e('L1_spin:')
    if G.SLP: a.e(f's_sleep {G.SLP}')
    a.e('buffer_load_dword v19, v18, s[16:19], 0 offen sc1')
    a.e('s_sub_u32 s28, s28, 1')
    a.e('s_waitcnt vmcnt(0)')
    a.e('s_cbranch_scc1 L1_back')
    a.e('v_cmp_ne_u32 vcc, 0, v19')
    a.e('s_nop 1\ns_cmp_eq_u64 vcc, -1\ns_cbranch_scc0 L1_spin')
    a.e('s_branch L1_back')
    a.reset()
    a.e('L1_wd:')
    a.e('s_load_dwordx2 s[8:9], s[0:1], 72')
    srd_consts(a, 8, G.NB_W)
    a.e('s_sub_u32 s63, s2, 224')
    for i in range(5):
        a.e(f'v_add_u32 v10, {64*i}, v2\nv_mul_u32_u24 v11, 6554, v10\nv_lshrrev_b32 v11, 16, v11')
        a.e(f'v_mul_u32_u24 v11, 1120, v11\nv_lshl_add_u32 v{4+i}, v10, 4, v11')
    a.e('s_lshr_b32 s64, s3, 1\ns_lshl1_add_u32 s64, s63, s64')
    a.e('s_and_b32 s65, s3, 1')
    a.e('s_mul_i32 s30, s64, 40960\ns_mul_i32 s31, s65, 640\ns_add_u32 s30, s30, s31')
    a.e('s_mul_i32 s31, s3, 20480')
    a.e('v_lshlrev_b32 v12, 4, v2')
    a.e('s_waitcnt lgkmcnt(0)')
    for b in (8, 16, 20): srd_fix(a, b)
    kvpf()
    a.e('s_cmp_ge_u32 s63, 27\ns_cbranch_scc1 L1_z')
    tk = []
    for un in range(4):
        for i in range(5):
            a.e(f's_add_u32 m0, s31, {5120*un+1024*i}')
            t_ = a.e(f'buffer_load_dwordx4 v{4+i}, s[8:11], s30 offen{NT("w")} lds' if 'D' not in G.DIAG else 's_nop 0')
        tk.append(t_)
        if un < 3: a.e('s_add_u32 s30, s30, 160')
    a.e('v_lshrrev_b32 v10, 2, v2\nv_mul_u32_u24 v10, 160, v10\nv_and_b32 v11, 3, v2\nv_mul_u32_u24 v11, 40, v11\nv_add3_u32 v10, v10, v11, s31')
    a.e('v_add_u32 v13, 4096, v12')
    a.e(f's_mul_i32 s32, s65, {4*276480}\ns_mul_i32 s33, s64, 5120\ns_add_u32 s32, s32, s33\ns_add_u32 s32, s32, {G.WDP}')
    F = 24
    for un in range(4):
        a.waitvm(tk[un])
        if un == 0: ts(a, 1)
        for t in range(5):
            for hh in range(2):
                a.e(f'ds_read_b64_tr_b16 {v(F+20*un+4*t+2*hh,2)}, v10 offset:{5120*un+2560*hh+8*t}')
        for t in range(5):
            if t < 4: a.e(f'buffer_store_dwordx4 {v(F+20*un+4*t,4)}, v12, s[20:23], s32 offen offset:{1024*t}{PSC}')
            else: a.e(f'buffer_store_dwordx4 {v(F+20*un+4*t,4)}, v13, s[20:23], s32 offen{PSC}')
        if un < 3: a.e('s_add_u32 s32, s32, 276480')
    ts(a, 2)
    rend(3, 'L2_join1')
    a.reset()
    a.e('L1_z:')
    if FU:
        ts(a, 1); ts(a, 2)
        rend(3, 'L2_join1')
        a.e('L1_end:\ns_endpgm')
        return a.text(), 512
    a.e(f's_sub_u32 s63, s63, 27\ns_lshl2_add_u32 s63, s63, s3\ns_lshl_b32 s63, s63, 12\ns_add_u32 s63, s63, {G.PST}')
    for i in range(4): a.e(f'v_mov_b32 v{24+i}, 0')
    for i in range(4): a.e(f'buffer_store_dwordx4 v[24:27], v12, s[20:23], s63 offen offset:{1024*i}')
    ts(a, 1); ts(a, 2)
    ts_end(a, 0, 3)
    a.e('L1_end:\ns_endpgm')
    return a.text(), 512
```

```python
import sys
from asmlib import *
import k1p as K1P

NAME = 'sequential_preLN__ssm_conv_h3__swiglu_ffn__prompt'
def al(x, a): return (x + a - 1) // a * a
XSTR = 82048
XA = 0
HT = al(XA + 64 * XSTR, 4096)
W1P = HT + 2621440
WDP = W1P + 16 * 20 * 14 * 1024
CS = WDP + 8 * 54 * 5 * 1024
ACT = al(CS + 4 * 14336, 4096)
PST = ACT + 32 * 56 * 4 * 1024
FL = PST + 65536
WSEND = FL + 16384
FUSE = 0
CFL = FL + 8192
SLP2 = 8
HSC1 = ''
PSC1 = ''
OSC = ''
NTS = 'xwpf'
G1PRE = 2
LD0 = 10
LDS_ = 24
NPRE = 2
POLLC = 2
POLLD = 40
CPF = 1
GBAR = 1
PFM = ['']
WSOFF = 0
WN0 = 0
SLP = 8
CPF2 = 1
NB_X = 2621440
NB_W = 2211840
LOG2E = 0x3fb8aa3b
MF = 'v_mfma_f32_16x16x32_bf16'

TSON = False
TSJ = 0
PF2 = False
DIAG = ''
DSP = 5
DOFF = 3
TSB = WSEND
def ts(a, i):
    if TSON:
        a.e(f's_memrealtime s[{80+2*i}:{81+2*i}]')
        if i in (1, 2): a.e(f's_memtime s[{72+2*i}:{73+2*i}]')
def ts_end(a, kid, n):
    if not TSON: return
    ts(a, n)
    a.e('s_waitcnt vmcnt(0) lgkmcnt(0)')
    ts(a, n + 1)
    a.e('s_getreg_b32 s98, hwreg(HW_REG_XCC_ID)\ns_getreg_b32 s99, hwreg(HW_REG_HW_ID)')
    a.e('s_mov_b64 exec, 1')
    a.e('v_readfirstlane_b32 s79, v0')
    a.e('s_lshr_b32 s79, s79, 6\ns_lshl2_add_u32 s79, s2, s79\ns_lshl_b32 s79, s79, 6')
    a.e(f's_add_u32 s79, s79, {TSB + kid * 131072}')
    a.e('s_waitcnt lgkmcnt(0)')
    for i in range(8): a.e(f'v_mov_b32 v{4+i}, s{80+2*i}' if i < n + 2 else f'v_mov_b32 v{4+i}, 0')
    a.e('v_mov_b32 v12, s98\nv_mov_b32 v13, s99\nv_mov_b32 v14, 0\ns_sub_u32 s76, s76, s74\nv_mov_b32 v15, s76\nv_mov_b32 v1, 0')
    a.e('s_mov_b32 s22, 0x10000000')
    for i in range(3): a.e(f'buffer_store_dwordx4 v[{4+4*i}:{7+4*i}], v1, s[20:23], s79 offen offset:{16*i}')

def code_pf(a, label):
    if not CPF: return
    a.e('s_getpc_b64 s[56:57]')
    a.e(f'Lpc_{label}:')
    a.e(f's_mov_b32 s58, Lcode_end-Lpc_{label}\ns_mov_b32 s59, 0x20000\ns_and_b32 s57, s57, 0xffff')
    a.e('v_lshlrev_b32 v254, 7, v0')
    if FUSE: a.e('s_mov_b32 s55, 32768\nbuffer_load_dword v252, v254, s[56:59], s55 offen')
    a.e('buffer_load_dword v254, v254, s[56:59], 0 offen')

def srd_consts(a, base, size):
    a.e(f's_mov_b32 s{base+2}, {size}')
    a.e(f's_mov_b32 s{base+3}, 0x20000')
def srd_fix(a, base):
    if base == 20 and WSOFF: a.e(f's_add_u32 s20, s20, {WSOFF}\ns_addc_u32 s21, s21, 0')
    a.e(f's_and_b32 s{base+1}, s{base+1}, 0xffff')

RESL = 135168 + 2048
K23_LDS = RESL + 12288
SPINMAX = 200000
KSO = [3, 31, 2, 6, 30, 34, 0, 4, 1, 5, 28, 32, 29, 33]
LT = [1100, 1100, 1700, 1700, 1700, 1700] + [3200] * 8
GAP = 64
GAPM = 64
WLEAD = 3
ACS = 1
VERB = 0
NPRO = 22
XQ = [0, 1, 2, 1, 2, 1, 2, 1, 2, 1, 2, 1, 2, 1, 2, 4, 7, 7, 7, 7]
RK = 15
FK = 12
PK = 18
CSK = 6
G0 = 0
E0P = (6, 13, 19)
TSR = 0
TSP = []
RLD = 9
CK0 = 10
def k23():
    a = Asm()
    a.e('s_cmp_ge_u32 s2, 256\ns_cbranch_scc1 L2_end'); ts(a, 0)
    a.e('s_load_dwordx2 s[20:21], s[0:1], 96')
    a.e('s_load_dwordx2 s[48:49], s[0:1], 80')
    if CPF2: code_pf(a, 'k23')
    srd_consts(a, 20, WSEND)
    a.e('v_lshrrev_b32 v1, 6, v0\nv_and_b32 v2, 63, v0')
    a.e('v_readfirstlane_b32 s3, v1')
    a.e('s_and_b32 s4, s2, 1\ns_lshl_b32 s4, s4, 3\ns_bfe_u32 s5, s2, 0x30003\ns_add_u32 s4, s4, s5')
    a.e('s_bfe_u32 s5, s2, 0x20001\ns_lshl_b32 s5, s5, 2\ns_lshr_b32 s6, s2, 6\ns_add_u32 s5, s5, s6')
    a.e('s_lshr_b32 s6, s3, 1\ns_and_b32 s7, s3, 1')
    a.e('v_lshlrev_b32 v3, 4, v2\nv_add_u32 v4, 4096, v3')
    a.e('s_mul_i32 s8, s3, 7168')
    a.e(f's_mul_i32 s9, s5, 286720\ns_add_u32 s9, s9, s8\ns_add_u32 s9, s9, {W1P}')
    a.e('s_add_u32 s8, s8, 49152')
    a.e('s_lshl_b32 s10, s3, 12')
    a.e(f's_mul_i32 s11, s4, 163840\ns_add_u32 s11, s11, s10\ns_add_u32 s11, s11, {HT}')
    a.e('s_waitcnt lgkmcnt(0)')
    srd_fix(a, 20)
    toks = {}
    dq = []
    for st in range(10):
        buf = st % 3; g = []
        for j in range(4): g.append([f'buffer_load_dwordx4 v3, s[20:23], s11 offen offset:{1024*j} lds'])
        for j in range(4): g.append([f'buffer_load_dwordx4 v3, s[20:23], s9 offen offset:{1024*j} lds'])
        for j in range(3): g.append([f'buffer_load_dwordx4 v4, s[20:23], s9 offen offset:{1024*j} lds'])
        g[0].insert(0, f's_add_u32 m0, s10, {buf*16384}')
        g[4].insert(0, f's_add_u32 m0, s8, {buf*28672}')
        g[8].insert(0, f's_add_u32 m0, s8, {buf*28672+4096}')
        g[3].append('s_add_u32 s11, s11, 16384')
        g[10] += [('tok', st), 's_add_u32 s9, s9, 28672']
        dq += [(st, x) for x in g]
    last = [None]
    def emit(x):
        if isinstance(x, tuple):
            if x[0] == 'tok': toks[x[1]] = last[0]
            else: a.waitvm(toks[x[1]])
            return
        if 'A' in DIAG and x.startswith('buffer') and 's9 ' in x and last[0]: return
        if 'B' in DIAG and x.startswith('buffer') and 's11 ' in x and last[0]: return
        i = a.e(x)
        if i.kind == 'vmem': last[0] = i
    for _ in range(NPRO):
        for x in dq.pop(0)[1]: emit(x)
    a.e('s_and_b32 s52, s2, 1\ns_lshl_b32 s52, s52, 4\ns_bfe_u32 s53, s2, 0x20001\ns_lshl2_add_u32 s52, s53, s52\ns_bfe_u32 s53, s2, 0x20003\ns_add_u32 s52, s52, s53')
    a.e('s_lshr_b32 s53, s2, 5')
    srd_consts(a, 48, NB_X); srd_consts(a, 40, 276480); srd_consts(a, 44, 54 * 4096); srd_fix(a, 48)
    a.e(f's_mul_i32 s55, s53, 276480\ns_add_u32 s55, s55, {WDP}')
    a.e(f's_mul_i32 s56, s52, 229376\ns_add_u32 s56, s56, {ACT}')
    a.e('s_add_u32 s40, s20, s55\ns_addc_u32 s41, s21, 0\ns_add_u32 s44, s20, s56\ns_addc_u32 s45, s21, 0')
    a.e(f's_mul_i32 s54, s3, 35840\ns_add_u32 s54, s54, {KSO[0]*5120}')
    ACC = 24; SUM = 136; SQ = 144; ONES = 152
    FA = [156, 200]; FB = [184, 228]
    a.e('s_mul_i32 s13, s7, 7168\ns_add_u32 s13, s13, 49152')
    a.e('v_add_u32 v6, s13, v3\nv_add_u32 v7, 57344, v6')
    a.e('v_lshrrev_b32 v12, 2, v2\nv_and_b32 v13, 7, v12\nv_lshlrev_b32 v12, 8, v12')
    a.e('v_and_b32 v14, 3, v2\nv_lshl_add_u32 v12, v14, 3, v12')
    a.e('s_lshl_b32 s14, s6, 2\ns_lshl_b32 s15, s7, 1\ns_or_b32 s14, s14, s15')
    for i in range(4):
        a.e(f's_xor_b32 s15, s14, {i}\nv_xor_b32 v14, s15, v13\nv_lshl_add_u32 v{8+i}, v14, 5, v12')
    for i in range(4): a.e(f'v_mov_b32 v{ONES+i}, 0x3f803f80')
    a.e(f's_mul_i32 s12, s5, 896\ns_add_u32 s12, s12, {CS}')
    a.e('v_min_u32 v5, 223, v0\nv_lshlrev_b32 v5, 2, v5')
    xq = [[f'buffer_load_dword v{249+p}, v5, s[20:23], s12 offen'] + (['s_add_u32 s12, s12, 14336'] if p < 3 else []) for p in range(4)]
    xq = [xq[0] + xq[1], xq[2] + xq[3]]
    csred = ['v_add_f32 v249, v249, v250', 'v_add_f32 v251, v251, v252', 'v_add_u32 v5, 135168, v5', 'v_add_f32 v249, v249, v251', 'ds_write_b32 v5, v249']
    a.e('v_lshrrev_b32 v248, 1, v2\nv_and_b32 v22, 7, v248\nv_lshlrev_b32 v248, 8, v248')
    a.e('s_and_b32 s55, s52, 1\ns_lshl2_add_u32 s55, s55, s3\nv_xor_b32 v22, s55, v22\nv_lshl_add_u32 v248, v22, 5, v248')
    a.e('v_and_b32 v22, 1, v2\nv_lshl_add_u32 v248, v22, 4, v248')
    a.e(f's_lshr_b32 s55, s52, 1\ns_mul_i32 s55, s55, 163840\ns_mul_i32 s56, s53, 20480\ns_add_u32 s55, s55, s56\ns_add_u32 s55, s55, {HT}')
    a.e(f's_mul_i32 s57, s3, 3072\ns_add_u32 s57, s57, {RESL}')
    resq = [[f's_add_u32 m0, s57, {1024*k}', 'buffer_load_dwordx4 v248, s[20:23], s55 offen lds'] + (['s_add_u32 s55, s55, 8192'] if k < 2 else []) for k in range(3)]
    a.e('s_lshr_b32 s16, s5, 1\ns_mul_i32 s16, s16, 7')
    a.e('s_and_b32 s17, s5, 1')
    a.e('s_lshl_b32 s18, s4, 1\ns_add_u32 s18, s18, s6\ns_mul_i32 s18, s18, 229376')
    a.e(f's_add_u32 s18, s18, {ACT}\ns_lshl_b32 s19, s16, 12\ns_add_u32 s18, s18, s19')
    a.e('s_lshl1_add_u32 s19, s17, s7\ns_lshl_b32 s19, s19, 8\ns_add_u32 s34, s18, s19\ns_add_u32 s34, s34, 12288')
    a.e('s_lshl_b32 s35, s7, 11\ns_add_u32 s18, s18, s35')
    a.e('s_lshl_b32 s19, s17, 14\ns_add_u32 s30, s18, s19')
    a.e('s_lshl_b32 s19, s7, 9\ns_add_u32 s32, s30, s19\ns_add_u32 s32, s32, 8192')
    a.e('s_lshl_b32 s19, s7, 12\ns_add_u32 s30, s30, s19')
    for r in (30, 32): a.e(f's_xor_b32 s{r+1}, s{r}, 2048')
    a.e('v_and_b32 v20, 31, v2\nv_lshlrev_b32 v20, 4, v20\nv_lshrrev_b32 v23, 5, v2\nv_lshl_add_u32 v20, v23, 10, v20')
    a.e('v_and_b32 v23, 0x100, v20\nv_xor_b32 v22, v20, v23\nv_lshl_or_b32 v23, v23, 3, v22\nv_xor_b32 v23, s35, v23')
    stC = lambda r: f'buffer_store_dwordx4 {v(r,4)}, v23, s[20:23], s34 offen sc1'
    stB = lambda r, p: f'buffer_store_dwordx4 {v(r,4)}, v20, s[20:23], s{32+p} offen sc1'
    stA = lambda r, i: f'buffer_store_dwordx4 {v(r,4)}, v3, s[20:23], s{30+(i>>1)} offen offset:{1024*(i&1)} sc1'
    for i in range(4): a.e(f'v_mov_b32 v{244+i}, -1')
    xq += [[x] for x in [stC(244), stB(244, 0), stB(244, 1)] + [stA(244, i) for i in range(4)]]
    xq[-1].append(('tok', 'fill'))
    a.e(f's_lshl1_add_u32 s36, s4, s6\ns_lshl_b32 s36, s36, 9\ns_lshl1_add_u32 s37, s5, s7\ns_lshl2_add_u32 s36, s37, s36\ns_add_u32 s36, s36, {FL}')
    a.e(f's_lshl_b32 s37, s52, 9\ns_add_u32 s37, s37, {FL}\ns_mov_b32 s39, {SPINMAX}')
    a.e('v_and_b32 v22, 31, v2\nv_lshlrev_b32 v22, 2, v22')
    def wreg(i, t):
        n = 5 * i + t
        if n < 64: return f'a[{4*n}:{4*n+3}]'
        if n < 69: return v(136 + 4 * (n - 64), 4)
        return v(216, 4)
    for i in range(14):
        for t in range(5):
            g = [f'buffer_load_dwordx4 {wreg(i,t)}, v{3 if t<4 else 4}, s[40:43], s54 offen' + (f' offset:{1024*t}' if 0 < t < 4 else '')]
            if t == 4 and i < 13:
                dl = (KSO[i + 1] - KSO[i]) * 5120
                g.append(f's_add_u32 s54, s54, {dl}' if dl > 0 else f's_sub_u32 s54, s54, {-dl}')
            xq.append(g)
    CSV = 156; ST = 184
    a.e('s_mov_b32 s24, 0x22222222\ns_mov_b32 s25, s24\ns_mov_b32 s26, 0x44444444\ns_mov_b32 s27, s26\ns_mov_b32 s28, 0x88888888\ns_mov_b32 s29, s28')
    a.e('v_and_b32 v12, 15, v2\nv_lshlrev_b32 v12, 3, v12')
    a.e('s_lshl_b32 s15, s14, 7\ns_add_u32 s15, s15, 136192')
    a.e('v_add_u32 v13, s15, v12')
    a.e('s_xor_b32 s15, s15, 256\nv_add_u32 v14, s15, v12')
    a.e('v_lshrrev_b32 v15, 4, v2\nv_lshlrev_b32 v15, 4, v15')
    a.e('s_mul_i32 s13, s7, 448\ns_add_u32 s13, s13, 135168\nv_add_u32 v15, s13, v15')
    a.e('s_mul_i32 s38, s3, 28672')
    for i in range(4):
        a.e(f's_xor_b32 s15, s3, {i}\ns_lshl_b32 s15, s15, 10\ns_add_u32 s15, s15, s38\nv_add_u32 v{16+i}, s15, v3')
    for g in range(14): a.e(f's_mov_b32 s{58+g}, {4096*KSO[g]}')
    def e0items():
        it = []
        for j in range(7): it.append((j, [f'ds_read_b128 {v(CSV+4*j,4)}, v15 offset:{64*j}']))
        p0, p1, p2 = E0P
        for k, (x, y, z) in enumerate(((0, 1, 24), (-7, 2, 26), (-7, 3, 28))):
            it.append((p0 + k, [f'v_cndmask_b32 v{SUM+4*i+1}, v{SQ+4*i+x}, v{SQ+4*i+y}, s[{z}:{z+1}]' for i in range(2)]))
        it.append((p0 + 3, ['s_mov_b32 exec_lo, 0x00f0000f', 's_mov_b32 exec_hi, 0xf0000f00'] +
                   [f'ds_write_b64 v13, {v(SUM+4*i,2)} offset:{128*i}' for i in range(2)] + ['s_mov_b64 exec, -1']))
        it.append((p1, ['s_waitcnt lgkmcnt(0)', 's_barrier'] + [f'ds_read_b64 {v(ST+4*i,2)}, v{13+(i>>1)} offset:{128*(i&1)}' for i in range(4)]))
        c = []
        for f in ('v_mul_f32 v{0}, 0xbacccccd, v{0}', 'v_mul_f32 v{1}, 0x3acccccd, v{1}', 'v_fma_f32 v{1}, -v{0}, v{0}, v{1}', 'v_max_f32 v{1}, 0, v{1}',
                  'v_add_f32 v{2}, 0x3727c5ac, v{1}', 'v_rsq_f32 v{1}, v{2}', 'v_mul_f32 v{1}, 0xbfb8aa3b, v{1}'):
            for i in range(4): c.append(f.format(ST + 4 * i, ST + 4 * i + 1, ST + 4 * i + 2))
        for k in range(0, len(c), 2): it.append((p2 + k // 2, c[k:k + 2]))
        return it
    def reads(kk):
        st, ks = kk >> 1, kk & 1
        buf = st % 3; A = FA[kk & 1]; B = FB[kk & 1]
        r = []
        for i in range(4):
            for hh in range(2):
                r.append(f'ds_read_b64_tr_b16 {v(B+4*i+2*hh,2)}, v{8+i} offset:{buf*16384+ks*8192+hh*4096}')
        for j in range(7):
            if buf < 2: r.append(f'ds_read_b128 {v(A+4*j,4)}, v6 offset:{buf*28672+ks*14336+j*1024}')
            else: r.append(f'ds_read_b128 {v(A+4*j,4)}, v7 offset:{ks*14336+j*1024}')
        return r
    a.waitvm(toks[0]); a.e('s_barrier')
    if not TSP: ts(a, 1)
    for x in reads(0): a.e(x)
    for kk in range(20):
        st, ks = kk >> 1, kk & 1
        A = FA[kk & 1]; B = FB[kk & 1]
        m = []
        c = lambda r: '0' if kk == 0 else v(r, 4)
        for i in range(2):
            m.append(f'{MF} {v(SUM+4*i,4)}, {v(ONES,4)}, {v(B+4*i,4)}, {c(SUM+4*i)}')
            m.append(f'{MF} {v(SQ+4*i,4)}, {v(B+4*i,4)}, {v(B+4*i,4)}, {c(SQ+4*i)}')
        for j in ((6, 2, 5, 0, 3, 1, 4) if kk == 19 else range(7)):
            for i in range(4):
                r = ACC + 16 * j + 4 * i
                m.append(f'{MF} {v(r,4)}, {v(A+4*j,4)}, {v(B+4*i,4)}, {c(r)}')
        if ks == 1 and kk < 19:
            a.e('s_waitcnt lgkmcnt(0)')
            a.waitvm(toks[st + 1]); a.e('s_barrier')
        it = []
        if kk < 19: it += [(n, [x]) for n, x in enumerate(reads(kk + 1))]
        else: it += e0items()
        avail = [x for x in dq if x[0] <= (kk + 5) // 2]
        nd = DQN[kk] if kk in DQN else (len(avail) if ks == 0 else min(len(avail), 6 + max(0, len(avail) - 11)))
        d = [dq.pop(0)[1] for _ in range(min(nd, len(avail)))]
        if kk == RK: assert not d and not dq; d = resq
        x_ = []
        for _ in range(XQ[kk]):
            if len(xq) > 6: x_.append(xq.pop(0))
        if kk == FK: x_.append([('wait', 'fill'), 's_mov_b64 exec, 1', f'buffer_store_dword v{ONES}, v22, s[20:23], s36 offen sc1', 's_mov_b64 exec, -1'])
        if kk == PK: x_.insert(0, ['buffer_load_dword v21, v22, s[20:23], s37 offen sc1'])
        mg = sorted([((n + .5) / len(d), 0, n, g) for n, g in enumerate(d)] + [((n + .5) / len(x_), 1, n, g) for n, g in enumerate(x_)], key=lambda z: z[:3])
        for n, z in enumerate(mg): it.append((G0 + int((n + .5) * (32 - G0) / len(mg)), z[3]))
        if kk == CSK: it += [(17 + 2 * n, [x]) for n, x in enumerate(csred)]
        it.sort(key=lambda z: z[0])
        for n, x in enumerate(m):
            emit(x)
            while it and it[0][0] <= n:
                for y in it.pop(0)[1]: emit(y)
        if kk < 19: assert not it
    if not TSP: ts(a, 2)
    e0rest = it; wl = xq
    return k23tail(a, locals())
DQN = {}

def k23tail(a, L):
    wl, wreg, stA, stB, stC = L['wl'], L['wreg'], L['stA'], L['stB'], L['stC']
    ACC, CSV, ST = L['ACC'], L['CSV'], L['ST']
    for _, x in L['e0rest']:
        for y in x: a.e(y)
    MX = 200; TM = 208; OUT = 228
    AC3 = [24, 40, 72, 88, 184]
    Q = {0: [120, 124, 128, 132], 1: [200, 204, 220, 224], 2: [56, 60, 64, 68], 3: [104, 108, 112, 116],
         4: [156, 160, 164, 168], 5: [172, 176, 180, 252], 6: [244, 248, 208, 212], 7: [228, 232, 236, 240]}
    QMIN = [0, 0, 2, 2, 3, 3, 8, 8]
    for g in range(8, 14): Q[g] = Q[g - 8]; QMIN.append(9 + g - 8 + 1)
    ld = lambda g, k: f'buffer_load_dwordx4 {v(Q[g][k],4)}, v{16+k}, s[44:47], s{58+g} offen sc1'
    def check(g):
        d = [q + i for q in Q[g] for i in range(4)]
        r = [f'v_max3_u32 v21, v{d[0]}, v{d[1]}, v{d[2]}']
        for i in range(3, 15, 2): r.append(f'v_max3_u32 v21, v21, v{d[i]}, v{d[i+1]}')
        r.append(f'v_max_u32 v21, v21, v{d[15]}')
        r.append('v_cmp_eq_u32 vcc, -1, v21')
        return r
    S = []
    e = lambda x: S.extend(x.split('\n'))
    pt = lambda n: S.append(('p', n))
    e('v_cmp_ne_u32 vcc, 0, v21')
    e('s_mov_b32 s24, 0\ns_mov_b32 s25, -1')
    e('s_cmp_eq_u64 vcc, -1\ns_cbranch_scc0 L2_fs')
    e('L2_fb:')
    pt(-1)
    for p in range(2):
        e(f'v_cndmask_b32 v{MX+4*p+1}, v{ST+8*p+1}, v{ST+8*p+5}, s[24:25]')
        e(f'v_cndmask_b32 v{MX+4*p+2}, v{ST+8*p+2}, v{ST+8*p+6}, s[24:25]')
    def csum(j, i):
        r = ACC + 16 * j + 4 * i
        for h in range(2):
            e(f'v_pk_fma_f32 {v(r+2*h,2)}, {v(CSV+4*j+2*h,2)}, {v(ST+4*i,2)}, {v(r+2*h,2)} op_sel_hi:[1,0,1]')
    def swiglu(its):
        for G, U, st, tm, out in its:
            for h in range(2): e(f'v_pk_mul_f32 {v(tm+2*h,2)}, {v(G+2*h,2)}, {v(st,2)} op_sel:[0,1] op_sel_hi:[1,1]')
        for G, U, st, tm, out in its:
            for k in range(4): e(f'v_exp_f32 v{tm+k}, v{tm+k}')
            for h in range(2): e(f'v_pk_mul_f32 {v(G+2*h,2)}, {v(G+2*h,2)}, {v(U+2*h,2)}')
        for G, U, st, tm, out in its:
            for h in range(2): e(f'v_pk_fma_f32 {v(tm+2*h,2)}, {v(tm+2*h,2)}, {v(st+2,2)}, {v(st+2,2)} op_sel_hi:[1,0,0]')
        for G, U, st, tm, out in its:
            for k in range(4): e(f'v_rcp_f32 v{tm+k}, v{tm+k}')
        for G, U, st, tm, out in its:
            for h in range(2): e(f'v_pk_mul_f32 {v(G+2*h,2)}, {v(G+2*h,2)}, {v(tm+2*h,2)}')
        for G, U, st, tm, out in its:
            for h in range(2): e(f'v_cvt_pk_bf16_f32 v{out+h}, v{G+2*h}, v{G+2*h+1}')
    for i in range(4): csum(6, i)
    for p in range(2):
        for k in range(4): e(f'v_permlane32_swap_b32 v{ACC+96+8*p+k}, v{ACC+96+8*p+4+k}')
    swiglu([(ACC + 96 + 8 * p, ACC + 96 + 8 * p + 4, MX + 4 * p, TM + 4 * p, 252 + 2 * p) for p in range(2)])
    for h in range(2): e(f'v_permlane16_swap_b32 v{252+h}, v{254+h}')
    e(stC(252)); pt(0)
    for p in range(2):
        for i in (2 * p, 2 * p + 1): csum(2, i); csum(5, i)
        swiglu([(ACC + 32 + 4 * i, ACC + 80 + 4 * i, ST + 4 * i, TM + 4 * (i & 1), 244 + 2 * i) for i in (2 * p, 2 * p + 1)])
        for h in range(2): e(f'v_permlane32_swap_b32 v{244+4*p+h}, v{246+4*p+h}')
        e(stB(244 + 4 * p, p)); pt(1 + p)
    for i in range(4):
        if ACS:
            for j in (0, 3, 1, 4): csum(j, i)
    if ACS: pt(3)
    for i in range(4):
        o = OUT + 4 * i
        if not ACS:
            for j in (0, 3, 1, 4): csum(j, i)
            if i == 3: pt(3)
        swiglu([(ACC + 16 * j + 4 * i, ACC + 16 * (j + 3) + 4 * i, ST + 4 * i, TM + 4 * j, o + 2 * j) for j in range(2)])
        pt(4 + i)
        e(stA(o, i))
    pt(8)
    S.append(('need', 0))
    for x in check(0): e(x)
    e('s_nop 1'); S.append(('br', 0))
    fin = []
    fin += ['v_lshrrev_b32 v11, 4, v2', 'v_and_b32 v12, 15, v2', 's_movk_i32 s30, 640', 'v_mul_u32_u24 v13, s30, v11', 'v_lshl_add_u32 v13, v12, 3, v13', 'v_add_u32 v13, s57, v13']
    fin += ['s_lshl_b32 s30, s52, 6', 's_lshl4_add_u32 s30, s3, s30', 'v_add_u32 v14, s30, v12', 's_movk_i32 s30, 1280', 'v_mul_u32_u24 v14, s30, v14']
    fin += ['v_mul_u32_u24 v11, 40, v11', 'v_add_u32 v14, v14, v11', 's_mul_i32 s31, s53, 160']
    for k in range(1, 4):
        fin += [f's_xor_b32 s25, s3, {k}', 's_mul_i32 s25, s25, 15360', f's_add_u32 s25, s25, {5120*(k-1)}', f'v_add_u32 v{5+k}, s25, v3']
    fin += ['s_mul_i32 s25, s3, 15360', 'v_add_u32 v5, s25, v3', 's_mov_b32 s32, 0xffff0000']
    RES = 104; RF = 116
    for g in range(14):
        items = []
        pt(9 + g); S.append(('needw', g))
        if g < 13:
            items.append((CK0, [('need', g + 1)]))
            for n, x in enumerate(check(g + 1)): items.append((CK0 + n, [x]))
        if g in (11, 12):
            f2 = fin[:16] if g == 11 else fin[16:]
            for n in range(0, len(f2), 2): items.append((n // 2, f2[n:n + 2]))
        if g == 13:
            items.append((0, ['s_waitcnt vmcnt(0)']))
            for t in range(5): items.append((t, [f'ds_read_b64_tr_b16 {v(RES+2*t,2)}, v13 offset:{128*t}']))
            for n in range(10): items.append((8 + n, [f'v_lshlrev_b32 v{RF+2*n}, 16, v{RES+n}', f'v_and_b32 v{RF+2*n+1}, s32, v{RES+n}']))
        items.sort(key=lambda z: z[0])
        n = 0
        for k in ((1, 2, 3, 0) if g == 13 else range(4)):
            for t in range(5):
                r = AC3[t] + 4 * k
                e(f'{MF} {v(r,4)}, {wreg(g,t)}, {v(Q[g][k],4)}, {"0" if g==0 else v(r,4)}')
                while items and items[0][0] <= n: S.extend(items.pop(0)[1])
                n += 1
        assert not items
        if g < 13: S.append(('br', g + 1))
    aq = [(g, k) for g in range(14) for k in range(4)]
    nw0 = 70 - len(wl)
    t = 0; tv = -GAP; cur = -2; inm = False; issued = []; brs = {}; log = []; nwd = 0
    seen = set()
    for x in S:
        if isinstance(x, tuple):
            if x[0] == 'p':
                seen.add(x[1]); log.append((x[1], t)); inm = x[1] >= 9
                if x[1] in TSP: ts(a, TSP.index(x[1]))
                elif not TSP and x[1] in (8, 9): ts(a, x[1] - 5)
            elif x[0] == 'need': assert (x[1], 3) in issued, x
            elif x[0] == 'needw': assert nw0 + nwd >= 5 * x[1] + 5, x
            else:
                g = x[1]; brs[g] = list(issued); a.e(f's_cbranch_vccnz L2_st{g}\nL2_bk{g}:')
            continue
        a.e(x)
        if x.startswith('buffer'): tv = t
        if x.startswith(MF): t += 16
        elif inm or x.endswith(':'): continue
        else: t += 8 if x.startswith(TRANS + ('v_pk',)) else 4
        if -1 in seen and t - tv >= (GAPM if inm else GAP):
            wfirst = wl and inm and (nw0 + nwd) // 5 <= max(seen) - 9 + WLEAD
            if aq and t >= LT[aq[0][0]] and QMIN[aq[0][0]] in seen and not wfirst:
                z = aq.pop(0); a.e(ld(*z)); issued.append(z); tv = t
                if z[1] in (0, 3): log.append((f'g{z[0]}.{z[1]}', t))
            elif wl:
                for y in wl.pop(0): a.e(y)
                tv = t; nwd += 1; log.append(('w', t))
    if VERB: print(log)
    assert not wl
    if not TSP: ts(a, 5)
    for k in range(1, 4):
        for t in range(5): a.e(f'ds_write_b128 v{5+k}, {v(AC3[t]+4*k,4)} offset:{1024*t}')
    for t in range(5):
        for h in range(2): a.e(f'v_pk_add_f32 {v(AC3[t]+2*h,2)}, {v(AC3[t]+2*h,2)}, {v(RF+4*t+2*h,2)}')
    a.e('s_waitcnt lgkmcnt(0)\ns_barrier')
    P = [136, 148, 160, 200, 212]
    for t in range(5):
        for k in range(3): a.e(f'ds_read_b128 {v(P[t]+4*k,4)}, v5 offset:{5120*k+1024*t}')
    O = 104
    for t in range(5):
        r = AC3[t]
        for h in range(2):
            a.e(f'v_pk_add_f32 {v(r+2*h,2)}, {v(r+2*h,2)}, {v(P[t]+2*h,2)}')
            a.e(f'v_pk_add_f32 {v(P[t]+4+2*h,2)}, {v(P[t]+4+2*h,2)}, {v(P[t]+8+2*h,2)}')
        for h in range(2): a.e(f'v_pk_add_f32 {v(r+2*h,2)}, {v(r+2*h,2)}, {v(P[t]+4+2*h,2)}')
        for h in range(2): a.e(f'v_cvt_pk_bf16_f32 v{O+2*t+h}, v{r+2*h}, v{r+2*h+1}')
    a.e(f'buffer_store_dwordx4 {v(O,4)}, v14, s[48:51], s31 offen{OSC}')
    a.e(f'buffer_store_dwordx4 {v(O+4,4)}, v14, s[48:51], s31 offen offset:16{OSC}')
    a.e(f'buffer_store_dwordx2 {v(O+8,2)}, v14, s[48:51], s31 offen offset:32{OSC}')
    if TSON: a.e(f's_sub_u32 s76, {SPINMAX}, s39\ns_mov_b32 s74, 0') if TSR else None
    ts_end(a, 1, 6)
    a.e('L2_end:\ns_endpgm')
    a.reset()
    a.e('L2_fs:')
    a.e('s_cmp_eq_u32 s39, 0\ns_cbranch_scc1 L2_fb\ns_sub_u32 s39, s39, 1')
    a.e('buffer_load_dword v21, v22, s[20:23], s37 offen sc1')
    a.e('s_waitcnt vmcnt(0)')
    a.e('v_cmp_ne_u32 vcc, 0, v21')
    a.e('s_nop 1\ns_cmp_eq_u64 vcc, -1\ns_cbranch_scc0 L2_fs\ns_branch L2_fb')
    for g in range(14):
        a.reset()
        a.e(f'L2_st{g}:')
        a.e(f's_cmp_eq_u32 s39, 0\ns_cbranch_scc1 L2_bk{g}\ns_sub_u32 s39, s39, 1')
        for k in range(4): a.e(ld(g, k))
        a.e('s_waitcnt vmcnt(0)')
        for x in check(g): a.e(x)
        a.e(f's_nop 1\ns_cbranch_vccnz L2_st{g}')
        for z in brs[g]:
            if g < z[0] <= g + RLD: a.e(ld(*z))
        a.e(f's_branch L2_bk{g}')
    return a.text(), 512

DQ = None
def diagk():
    a = Asm()
    a.e('s_cmp_ge_u32 s2, 1\ns_cbranch_scc1 L9_end')
    a.e('s_load_dwordx2 s[20:21], s[0:1], 96')
    a.e('s_mov_b32 s22, 0x10000000\ns_mov_b32 s23, 0x20000')
    a.e('s_waitcnt lgkmcnt(0)')
    a.e('s_and_b32 s21, s21, 0xffff')
    a.e('v_lshlrev_b32 v1, 6, v0')
    def red(q, dst, base):
        kid, idx, lo, hi, op = q
        n = (hi - lo) // 64
        for i in range(n):
            a.e(f's_mov_b32 s30, {TSB + kid * 131072 + (lo + 64 * i) * 64}')
            a.e(f'buffer_load_dwordx4 v[{4+8*i}:{7+8*i}], v1, s[20:23], s30 offen sc1\nbuffer_load_dwordx4 v[{8+8*i}:{11+8*i}], v1, s[20:23], s30 offen offset:16 sc1')
        for i in range(n):
            if idx < 0:
                for k in range(5, 12): a.e(f'v_max_u32 v{4+8*i}, v{4+8*i}, v{k+8*i}')
                r = 4 + 8 * i
            else: r = 4 + idx + 8 * i
            if base: a.e(f'v_subrev_u32 v{r}, {base}, v{r}')
            if i == 0: a.e(f'v_mov_b32 v2, v{r}')
            else: a.e(f'v_{ {"min":"min","max":"max","avg":"add"}[op] }_u32 v2, v2, v{r}')
        a.e('s_nop 4')
        a.e(f'v_readlane_b32 {dst}, v2, 0')
        for l in range(1, 64):
            a.e(f'v_readlane_b32 s31, v2, {l}')
            a.e(f's_{ {"min":"min","max":"max","avg":"add"}[op] }_u32 {dst}, {dst}, s31')
        if op == 'avg':
            a.e(f's_mul_i32 {dst}, {dst}, {round(65536 / (64 * n))}\ns_lshr_b32 {dst}, {dst}, 16')
    red((0, 0, 0, 1024, 'min'), 's40', None)
    red(DQ[0], 's41', 's40'); red(DQ[1], 's42', 's40')
    a.e(f's_sub_u32 s42, s42, s41\ns_mul_i32 s42, s42, {DQ[2]}\ns_min_u32 s42, s42, 30000')
    a.e('s_memrealtime s[44:45]\ns_waitcnt lgkmcnt(0)')
    a.e('L9_spin:')
    a.e('s_memrealtime s[46:47]\ns_waitcnt lgkmcnt(0)')
    a.e('s_sub_u32 s46, s46, s44\ns_cmp_lt_u32 s46, s42\ns_cbranch_scc1 L9_spin')
    a.e('L9_end:\ns_endpgm')
    return a.text(), 256

def build(extra_empty=0):
    ks = [('conv_kernel', lambda: K1P.k1p(sys.modules[__name__]), 256, 81920 + 40960 + 1024),
          (NAME + '_kernel', k23, 256, K23_LDS)]
    if FUSE:
        def fused():
            t1, _ = K1P.k1p(sys.modules[__name__]); t2, _ = k23()
            return t1 + t2, 512
        ks = [(NAME + '_kernel', fused, 256, K23_LDS)]
    if DQ: ks.append(('diag_kernel', diagk, 1, 0))
    hdr = ['; generated by dev/gen4.py: 2-kernel pipeline (LN1 + shift conv + long conv + weight packing; LN2 + gate/up GEMM + down GEMM)']
    for n, f, g, l in ks: hdr.append(f'; @launch kernel={n} grid=({g},1,1) block=({64 if g == 1 else 256},1,1) lds={l}')
    for i in range(extra_empty): hdr.append(f'; @launch kernel=empty_kernel grid=(256,1,1) block=(256,1,1) lds=0')
    out = '\n'.join(hdr) + '\n.amdgcn_target "amdgcn-amd-amdhsa--gfx950"\n.text\n'
    desc = '.section .rodata,"a"\n'
    if extra_empty: ks = ks + [('empty_kernel', lambda: ('  s_endpgm\n', 64), 256, 0)]
    for n, f, g, l in ks:
        body, nv = f()
        out += f'.globl {n}\n.p2align 8\n.type {n},@function\n{n}:\n{body}'
        desc += f'''.p2align 6
.amdhsa_kernel {n}
  .amdhsa_next_free_vgpr {nv}
  .amdhsa_next_free_sgpr 102
  .amdhsa_accum_offset {min(nv,256)}
  .amdhsa_group_segment_fixed_size 0
  .amdhsa_kernarg_size 104
  .amdhsa_user_sgpr_count 2
  .amdhsa_user_sgpr_kernarg_segment_ptr 1
  .amdhsa_system_sgpr_workgroup_id_x 1
  .amdhsa_float_denorm_mode_32 3
.end_amdhsa_kernel
'''
    return out + 'Lcode_end:\n' + desc

if __name__ == '__main__':
    ee = int(sys.argv[2]) if len(sys.argv) > 2 else 0
    if len(sys.argv) > 3 and sys.argv[3] == '1': TSON = True
    for kv in sys.argv[4:]:
        k_, v_ = kv.split('=', 1)
        globals()[k_] = eval(v_)
    open(sys.argv[1], 'w').write(build(ee))
```
